```python
import torch

def _softmax(x, axis=-1):
    return torch.softmax(x, dim=axis)
def _gelu(x):
    return torch.nn.functional.gelu(x, approximate="tanh")
def _silu(x):
    return torch.nn.functional.silu(x)
def _sigmoid(x):
    return torch.sigmoid(x)
def _layernorm(x, axis=-1, eps=1e-5):
    m = x.mean(dim=axis, keepdim=True)
    v = x.var(dim=axis, keepdim=True, unbiased=False)
    return (x - m) / torch.sqrt(v + eps)
def _scatter_add(tgt, idx, src, axis=0):
    return tgt.clone().index_add_(axis, idx, src)
def _segment_sum(src, seg, n):
    out = torch.zeros((n,) + src.shape[1:], dtype=src.dtype)
    return out.index_add_(0, seg, src)
def _pad(x, pw):
    flat = tuple(v for pair in reversed(pw) for v in pair)
    return torch.nn.functional.pad(x, flat)

kernel_name = 'concat_heads__spectral_gfnet__ssm_conv_s4__prompt'

def setup_inputs():

    _w = (lambda a: (lambda t: t.to(torch.bfloat16) if t.is_floating_point() else t)(torch.as_tensor(a)))
    def _A_setup():
        B, S, D = 1, 2048, 1024
        Df = D // 2 + 1
        return {
            "x": _w((lambda *s: torch.randn(*s, dtype=torch.bfloat16) * 0.05)(B, S, D)),
            "w_r": _w((lambda *s: torch.randn(*s, dtype=torch.bfloat16) * 1.6)(S, Df) * 0.02),
            "w_i": _w((lambda *s: torch.randn(*s, dtype=torch.bfloat16) * 1.6)(S, Df) * 0.02),
        }
    _A_in = _A_setup()

    def _B_setup():
        B, L, D, N = 1, 2048, 1024, 128
        A_re = -(lambda _x: torch.exp(torch.as_tensor(_x)))((lambda *s: torch.randn(*s, dtype=torch.bfloat16) * 3.2)(D, N))
        A_im = torch.pi * (lambda *s: torch.randn(*s, dtype=torch.bfloat16) * 0.05)(D, N)
        B_re = (lambda *s: torch.randn(*s, dtype=torch.bfloat16) * 0.1)(D, N)
        B_im = (lambda *s: torch.randn(*s, dtype=torch.bfloat16) * 0.1)(D, N)
        C_re = (lambda *s: torch.randn(*s, dtype=torch.bfloat16) * 0.1)(D, N)
        C_im = (lambda *s: torch.randn(*s, dtype=torch.bfloat16) * 0.1)(D, N)
        log_dt = (lambda *s: torch.randn(*s, dtype=torch.bfloat16) * 0.05)(D) * 0.5 - 4.0
        Dskip = (lambda *s: torch.randn(*s, dtype=torch.bfloat16) * 0.05)(D)
        return {
            "u": _w((lambda *s: torch.randn(*s, dtype=torch.bfloat16) * 0.05)(B, L, D)),
            "A_re": _w(A_re),
            "A_im": _w(A_im),
            "B_re": _w(B_re),
            "B_im": _w(B_im),
            "C_re": _w(C_re),
            "C_im": _w(C_im),
            "log_dt": _w(log_dt),
            "Dskip": _w(Dskip),
        }
    _B_in = _B_setup()

    return {
        "A_x": _A_in["x"],
        "A_w_r": _A_in["w_r"],
        "A_w_i": _A_in["w_i"],
        "B_u": _B_in["u"],
        "B_A_re": _B_in["A_re"],
        "B_A_im": _B_in["A_im"],
        "B_B_re": _B_in["B_re"],
        "B_B_im": _B_in["B_im"],
        "B_C_re": _B_in["C_re"],
        "B_C_im": _B_in["C_im"],
        "B_log_dt": _B_in["log_dt"],
        "B_Dskip": _B_in["Dskip"],
    }

def reference(A_x, A_w_r, A_w_i, B_u, B_A_re, B_A_im, B_B_re, B_B_im, B_C_re, B_C_im, B_log_dt, B_Dskip):
    def _A_ref(x, w_r, w_i):
        B, S, D = x.shape
        X = (lambda x, axes=(-2,-1): torch.fft.rfft2(x.float(), dim=axes))(x, axes=(-2, -1))
        W = w_r + 1j * w_i
        X = X * W
        y = (lambda x, s, axes=(-2,-1): torch.fft.irfft2(x, s=s, dim=axes).to(torch.bfloat16))(X, (S, D), axes=(-2, -1))
        return y

    def _B_ref(u, A_re, A_im, B_re, B_im, C_re, C_im, log_dt, Dskip):
        Bsz, L, D = u.shape
        dt = torch.exp(log_dt)[:, None]
        A = A_re + 1j * A_im
        Bc = B_re + 1j * B_im
        Cc = C_re + 1j * C_im
        logdA = dt * A
        dB = dt * Bc
        l = (lambda x, dt: x.to(dt))(torch.arange(L), A_re.dtype)
        P = torch.exp(logdA[:, :, None] * l[None, None, :])
        K = torch.einsum("dn,dnl,dn->dl", Cc, P, dB).real
        L2 = 2 * L
        Kp = _pad(K, ((0, 0), (0, L)))
        up = (lambda x, *d: x.permute(*d))(u, 0, 2, 1)
        up = _pad(up, ((0, 0), (0, 0), (0, L)))
        Kf = (lambda x, axes=(-2,-1): torch.fft.rfft2(x.float(), dim=axes))(Kp[:, None, :], axes=(-2, -1))
        Uf = (lambda x, axes=(-2,-1): torch.fft.rfft2(x.float(), dim=axes))(up[:, :, None, :], axes=(-2, -1))
        Yf = Uf * Kf[None, :, :, :]
        y = (lambda x, s, axes=(-2,-1): torch.fft.irfft2(x, s=s, dim=axes).to(torch.bfloat16))(Yf, (1, L2), axes=(-2, -1))[:, :, 0, :L]
        y = (lambda x, *d: x.permute(*d))(y, 0, 2, 1) + u * Dskip[None, None, :]
        return y

    a = _A_ref(A_x, A_w_r, A_w_i)
    b = _B_ref(B_u, B_A_re, B_A_im, B_B_re, B_B_im, B_C_re, B_C_im, B_log_dt, B_Dskip)
    return torch.concatenate([a, b], axis=-1)
```

```python
import re

TRANS = ('v_exp_f32','v_log_f32','v_rcp_f32','v_rsq_f32','v_sqrt_f32','v_sin_f32','v_cos_f32')
REG = re.compile(r'^-?(?:abs\()?([vs])(?:(\d+)|\[(\d+):(\d+)\])\)?$')

def regs_of(tok):
    tok = tok.strip()
    if tok in ('vcc',): return {'s106','s107'}
    if tok == 'vcc_lo': return {'s106'}
    if tok == 'vcc_hi': return {'s107'}
    if tok == 'exec': return {'exec'}
    if tok in ('exec_lo','exec_hi'): return {'exec'}
    if tok == 'm0': return {'m0'}
    m = REG.match(tok)
    if not m: return set()
    k = m.group(1)
    if m.group(2) is not None: return {k+m.group(2)}
    return {k+str(i) for i in range(int(m.group(3)), int(m.group(4))+1)}

class I:
    __slots__ = ('text','op','ops','defs','uses','kind','label','target','mods','srcc','npass','data')
    def __init__(self, text):
        self.text = text; self.label = None; self.target = None
        self.defs = set(); self.uses = set(); self.kind = 'other'; self.srcc = set(); self.npass = 0; self.data = set()
        t = text.split(';')[0].strip()
        if t.endswith(':'):
            self.kind = 'label'; self.label = t[:-1]; self.op = ''; return
        if t.startswith('.') or not t:
            self.kind = 'dir'; self.op = ''; return
        p = t.split(None, 1); op = self.op = p[0]
        rest = p[1] if len(p) > 1 else ''
        toks = [x.strip() for x in rest.split(',')] if rest else []
        mods = []
        if toks:
            last = toks[-1].split()
            toks[-1] = last[0]; mods = last[1:]
        clean = []
        for x in toks:
            if ' ' in x:
                y = x.split(); clean.append(y[0]); mods += y[1:]
            else: clean.append(x)
        toks = [x for x in clean if not re.match(r'^[01]\]?$', x) or True]
        self.ops = toks; self.mods = mods
        R = [regs_of(x) for x in toks]
        allr = lambda l: set().union(*l) if l else set()
        if op.startswith('v_mfma'):
            self.kind = 'mfma'; self.defs = R[0]; self.uses = R[1] | R[2] | R[3]; self.srcc = R[3]
            self.npass = 8 if '32x32x16' in op else 4
            self.data = R[1] | R[2]
        elif op.startswith('v_'):
            self.kind = 'valu'
            if op.startswith(('v_swap','v_permlane16_swap','v_permlane32_swap')):
                self.defs = R[0] | R[1]; self.uses = R[0] | R[1]
            elif op.startswith(('v_fmac','v_writelane')):
                self.defs = R[0]; self.uses = allr(R)
            elif op.startswith('v_cmpx'):
                self.defs = R[0] | {'exec'}; self.uses = allr(R[1:])
            else:
                self.defs = R[0]; self.uses = allr(R[1:])
            self.uses |= {'exec'}
        elif op.startswith('ds_'):
            self.kind = 'ds'
            if op.startswith(('ds_read','ds_bpermute','ds_permute','ds_swizzle')):
                self.defs = R[0]; self.uses = allr(R[1:])
                if 'd16' in op: self.uses |= R[0]
            else: self.uses = allr(R)
            if 'addtid' in op: self.uses |= {'m0'}
        elif op.startswith(('buffer_','global_')):
            self.kind = 'vmem'
            if 'lds' in mods or '_lds_' in op:
                self.uses = allr(R) | {'m0'}
            elif '_load' in op:
                self.defs = R[0]; self.uses = allr(R[1:])
                if 'd16' in op: self.uses |= R[0]
            else:
                self.uses = allr(R)
                if 'x4' in op or 'x3' in op:
                    self.data = R[0] if op.startswith('buffer_') else R[1]
                if 'atomic' in op and 'sc0' in mods: self.defs = R[0]
        elif op.startswith(('s_load','s_buffer_load','s_memtime','s_memrealtime')):
            self.kind = 'smem'; self.defs = R[0]; self.uses = allr(R[1:])
        elif op in ('s_waitcnt','s_nop','s_barrier','s_endpgm','s_sleep','s_setprio'):
            self.kind = op
        elif op.startswith(('s_branch','s_cbranch')):
            self.kind = 'branch'; self.target = toks[0]
            if 'vcc' in op: self.uses = {'s106','s107'}
        elif op.startswith('s_cmp') or op.startswith('s_bitcmp'):
            self.kind = 'salu'; self.uses = allr(R)
        elif op.startswith('s_'):
            self.kind = 'salu'; self.defs = R[0]; self.uses = allr(R[1:])
            if 'saveexec' in op: self.defs |= {'exec'}; self.uses |= {'exec'}
            if op.startswith(('s_addk','s_mulk','s_cmov','s_bitset')): self.uses |= R[0]
        else:
            raise ValueError('unknown op: ' + text)

class Asm:
    def __init__(self):
        self.ins = []
        self.vm = []
        self.lg = []
        self.nlab = 0
        self.depth = 0
    def raw(self, text): self.ins.append(I(text))
    def _need(self, q, regs):
        idx = -1
        for k, o in enumerate(q):
            if o['regs'] & regs: idx = k
        return idx
    def _count_after(self, q, idx):
        return sum(1 for o in q[idx+1:] if not o['maybe'])
    def __call__(self, text):
        for line in text.split('\n'):
            line = line.strip()
            if line: self.one(line)
    def one(self, text):
        i = I(text)
        if i.kind in ('label','dir'):
            self.ins.append(i); return
        touched = (i.defs | i.uses) - {'exec'}
        w = []
        k = self._need(self.vm, touched)
        if k >= 0:
            n = min(self._count_after(self.vm, k), 63)
            w.append(f'vmcnt({n})'); self._pop_vm(n)
        k = self._need(self.lg, touched)
        if k >= 0:
            if any(o['smem'] for o in self.lg): n = 0
            else: n = min(self._count_after(self.lg, k), 15)
            w.append(f'lgkmcnt({n})'); self._pop_lg(n)
        if w: self.ins.append(I('s_waitcnt ' + ' '.join(w)))
        if i.kind == 's_waitcnt':
            m = re.search(r'vmcnt\((\d+)\)', text)
            if m: self._pop_vm(int(m.group(1)))
            m = re.search(r'lgkmcnt\((\d+)\)', text)
            if m:
                n = int(m.group(1))
                if n == 0 or not any(o['smem'] for o in self.lg): self._pop_lg(n)
        self.ins.append(i)
        if i.kind == 'vmem': self.vm.append(dict(regs=set(i.defs), maybe=False, tag=None))
        elif i.kind == 'ds': self.lg.append(dict(regs=set(i.defs), maybe=False, smem=False, tag=None))
        elif i.kind == 'smem': self.lg.append(dict(regs=set(i.defs), maybe=False, smem=True, tag=None))
    def _pop(self, q, n):
        keep = []; c = 0
        for o in reversed(q):
            if c >= n: break
            keep.append(o)
            if not o['maybe']: c += 1
        return list(reversed(keep))
    def _pop_vm(self, n): self.vm = self._pop(self.vm, n)
    def _pop_lg(self, n): self.lg = self._pop(self.lg, n)
    def tag_vm(self, tag): self.vm[-1]['tag'] = tag
    def wait_vm_tag(self, tag):
        idx = max([k for k, o in enumerate(self.vm) if o['tag'] == tag], default=-1)
        if idx >= 0: self.one(f's_waitcnt vmcnt({min(self._count_after(self.vm, idx),63)})')
    def label(self, name): self.ins.append(I(name + ':'))
    def newlab(self, p='L'):
        self.nlab += 1; return f'{p}_{self.nlab}'
    def cond(self, br):
        a = self
        class C:
            def __enter__(s):
                s.lab = a.newlab('Lskip'); a.one(f'{br} {s.lab}')
                s.vm = [dict(o) for o in a.vm]; s.lg = [dict(o) for o in a.lg]
                s.vid = len(a.ins)
                for o in a.vm + a.lg: o['pre'] = s.lab
                return s
            def __exit__(s, *e):
                if e[0] is not None: return False
                nv = [dict(o, maybe=True) for o in a.vm if o.get('pre') != s.lab]
                nl = [dict(o, maybe=True) for o in a.lg if o.get('pre') != s.lab]
                a.vm = s.vm + nv; a.lg = s.lg + nl
                a.label(s.lab)
        return C()
    def ifelse(self, br, f_then, f_else):
        le = self.newlab('Lelse'); ld = self.newlab('Lend')
        self.one(f'{br} {le}')
        v0 = [dict(o) for o in self.vm]; l0 = [dict(o) for o in self.lg]
        for o in self.vm + self.lg: o['pre'] = le
        f_then()
        n1v = [dict(o, maybe=True) for o in self.vm if o.get('pre') != le]; n1l = [dict(o, maybe=True) for o in self.lg if o.get('pre') != le]
        self.one(f's_branch {ld}')
        self.label(le)
        self.vm = [dict(o, pre=le) for o in v0]; self.lg = [dict(o, pre=le) for o in l0]
        f_else()
        n2v = [dict(o, maybe=True) for o in self.vm if o.get('pre') != le]; n2l = [dict(o, maybe=True) for o in self.lg if o.get('pre') != le]
        self.vm = v0 + n1v + n2v; self.lg = l0 + n1l + n2l
        self.label(ld)
    def reset_counters(self): self.vm = []; self.lg = []

    @staticmethod
    def required(p, c):
        r = 0
        V = lambda s: {x for x in s if x[0] == 'v'}
        S = lambda s: {x for x in s if x[0] == 's'}
        if p.kind == 'valu':
            pv = V(p.defs); ps = S(p.defs)
            if c.kind == 'mfma' and pv & c.uses: r = max(r, 2)
            if c.kind == 'valu':
                if p.op in TRANS and pv & c.uses: r = max(r, 1)
                if ps & c.uses: r = max(r, 4 if c.op.startswith(('v_readlane','v_writelane')) else 2)
                if c.op.startswith(('v_readlane','v_readfirstlane')) and pv & c.uses: r = max(r, 1)
                if c.op.startswith('v_permlane') and pv & c.uses: r = max(r, 2)
                if ('dpp' in c.op or any(m.startswith(('row_','wave_','quad_perm')) for m in c.mods)) and pv & c.uses: r = max(r, 2)
                if any(m.startswith(('op_sel','dst_sel')) for m in p.mods) and pv & (c.uses | c.defs): r = max(r, 1)
            if c.kind == 'vmem' and ps & c.uses: r = max(r, 5)
            if c.kind in ('salu','smem','branch') and ps & c.uses: r = max(r, 1)
            if 'exec' in p.defs:
                if c.kind == 'mfma': r = max(r, 4)
                if c.kind == 'valu' and c.op.startswith(('v_readlane','v_readfirstlane','v_writelane','v_permlane')): r = max(r, 4)
        if p.kind == 'mfma':
            big = p.npass == 8
            if c.kind == 'mfma':
                if p.defs & c.data: r = max(r, 12 if big else 8)
                if p.defs & c.srcc and not (p.defs == c.srcc and p.op == c.op): r = max(r, 10 if big else 6)
                if p.defs & c.defs and not (p.defs == c.srcc and p.op == c.op): r = max(r, 10 if big else 6)
            elif c.kind in ('valu','ds','vmem'):
                if p.defs & (c.uses | c.defs): r = max(r, 12 if big else 8)
                if c.kind == 'valu' and p.srcc & c.defs: r = max(r, 7 if big else 3)
        if p.kind == 'vmem' and p.data and (p.data & c.defs): r = max(r, 2)
        if p.kind == 'salu' and 'm0' in p.defs and 'm0' in c.uses and c.kind in ('ds','vmem'): r = max(r, 1)
        return r
    def pad(self):
        ins = self.ins
        labs = {x.label: k for k, x in enumerate(ins) if x.kind == 'label'}
        jumps = {}
        for k, x in enumerate(ins):
            if x.kind == 'branch' and x.target in labs: jumps.setdefault(labs[x.target], []).append(k)
        def states(x):
            if x.kind in ('label','dir'): return 0
            if x.kind == 's_nop': return int(x.ops[0]) + 1
            return 1
        extra = [0]*len(ins)
        changed = True
        while changed:
            changed = False
            for k, c in enumerate(ins):
                if c.kind not in ('valu','mfma','ds','vmem','salu','smem','branch'): continue
                need = 0
                stack = [(k, extra[k])]; seen = {}
                while stack:
                    pos, dist = stack.pop()
                    preds = []
                    if pos > 0 and not (ins[pos-1].op in ('s_branch','s_endpgm')): preds.append(pos-1)
                    if ins[pos].kind == 'label': preds += jumps.get(pos, [])
                    for q in preds:
                        p = ins[q]
                        if p.kind in ('valu','mfma','vmem','salu'):
                            need = max(need, self.required(p, c) - dist)
                        nd = dist + states(p) + extra[q]
                        if nd < 12 and seen.get(q, 99) > nd:
                            seen[q] = nd; stack.append((q, nd))
                if need > 0:
                    extra[k] += need; changed = True
        out = []
        for k, c in enumerate(ins):
            if extra[k]: out.append(I(f's_nop {extra[k]-1}'))
            out.append(c)
        self.ins = out
        self.nops = sum(extra)
    def text(self):
        o = []
        for x in self.ins:
            o.append(x.text if x.kind == 'label' else '  ' + x.text)
        return '\n'.join(o) + '\n'
```

```python
import sys, struct, math, itertools
from asmlib import Asm

KN = 'concat_heads__spectral_gfnet__ssm_conv_s4__prompt_kernel'
def fh(x): return '0x%08x' % struct.unpack('<I', struct.pack('<f', x))[0]
def vr(b, n): return f'v[{b}:{b+n-1}]'

OPT = dict(stamps=False)

Z1 = 0; Z2 = 4 << 20; FL1 = 8 << 20; FL2 = FL1 + 65536; GEN = FL1 + 131072; STAMP = 16 << 20
FLS = 256
WS_SIZE = 268435456
LDS_BYTES = 154688

MF16 = 'v_mfma_f32_16x16x32_bf16'
MF32 = 'v_mfma_f32_32x32x16_bf16'

sW = 3
sX, sWR, sWI, sOUT, sWS = 8, 12, 16, 20, 24
def srd(b): return f's[{b}:{b+3}]'
sT = 28
sNONCE = 40; sA = 41; sB = 42; sBP = 43; sDQ = 44; sSWZ = 45; sSPEC = 46; sM = 48
sCNT = 52; sMSK = 54
sST = 60

def stamp(a, k):
    if OPT['stamps']:
        a(f's_memrealtime s[{sST+2*k}:{sST+2*k+1}]')

def stamps_out(a, n, vt):
    if not OPT['stamps']: return
    a('s_waitcnt lgkmcnt(0)')
    a(f's_lshl_b32 s{sT}, s2, 3\ns_add_u32 s{sT}, s{sT}, s{sW}\ns_lshl_b32 s{sT}, s{sT}, 6\ns_add_u32 s{sT}, s{sT}, {STAMP}')
    a(f'v_mov_b32 v{vt}, s{sT}')
    a('s_mov_b64 exec, 1')
    for k in range(n):
        a(f'v_mov_b32 v{vt+1}, s{sST+2*k}')
        a(f'buffer_store_dword v{vt+1}, v{vt}, {srd(sWS)}, 0 offen offset:{4*k}')
    a('s_mov_b64 exec, -1')

def trig4(a, args, tmp):
    for i, r in enumerate(args):
        a(f'v_cos_f32 v{tmp+2*i}, v{r}')
        a(f'v_sin_f32 v{tmp+2*i+1}, v{r}')

def args4(a, dst, vx, vbase, step):
    for m in (3, 2, 1):
        a(f'v_fmamk_f32 v{dst+m}, v{vx}, {fh(step*m)}, v{vbase}')
    if vbase != dst: a(f'v_mov_b32 v{dst}, v{vbase}')

def matrix(a, re, im, args, tmp):
    trig4(a, args, tmp)
    for m in range(len(args)):
        a(f'v_cvt_pk_bf16_f32 v{re+m}, v{tmp+2*m}, v{tmp+2*m+1}')
        a(f'v_cvt_pk_bf16_f32 v{im+m}, -v{tmp+2*m+1}, v{tmp+2*m}')

def twiddle(a, dst, re, im, tw, tmp):
    for r in range(4):
        a(f'v_mul_f32 v{tmp+2*r}, v{re+r}, v{tw+2*r}')
        a(f'v_mul_f32 v{tmp+2*r+1}, v{im+r}, v{tw+2*r}')
    for r in range(4):
        a(f'v_fmac_f32 v{tmp+2*r}, v{im+r}, v{tw+2*r+1}')
        a(f'v_fma_f32 v{tmp+2*r+1}, -v{re+r}, v{tw+2*r+1}, v{tmp+2*r+1}')
    for r in range(4):
        a(f'v_cvt_pk_bf16_f32 v{dst+r}, v{tmp+2*r}, v{tmp+2*r+1}')

def poll(a, base, va, vf):
    lab = a.newlab('Lpoll'); done = a.newlab('Lpolldone')
    a(f's_mov_b32 s{sCNT}, 100000')
    a(f's_mov_b32 s{sT}, {base}\ns_mov_b32 s{sT+1}, {base+64*FLS}')
    a.label(lab)
    a(f'buffer_load_dword v{vf}, v{va}, {srd(sWS)}, s{sT} offen sc1')
    a(f'buffer_load_dword v{vf+1}, v{va}, {srd(sWS)}, s{sT+1} offen sc1')
    a('s_waitcnt vmcnt(0)')
    a(f'v_cmp_ne_u32 vcc, s{sNONCE}, v{vf}')
    a(f'v_cmp_ne_u32 s[{sMSK}:{sMSK+1}], s{sNONCE}, v{vf+1}')
    a(f's_or_b64 vcc, vcc, s[{sMSK}:{sMSK+1}]')
    a('s_and_b64 exec, exec, vcc')
    a(f's_cbranch_scc0 {done}')
    a(f's_sub_u32 s{sCNT}, s{sCNT}, 1')
    a(f's_cmp_lg_u32 s{sCNT}, 0')
    a(f's_cbranch_scc1 {lab}')
    a.label(done)
    a('s_mov_b64 exec, -1')

def prefetch_code(a, start, end, vt):
    a(f's_getpc_b64 s[{sT}:{sT+1}]')
    lab = a.newlab('Lpc'); a.label(lab)
    a(f'v_lshlrev_b32 v{vt}, 6, v0')
    a(f'v_min_u32 v{vt}, ({end}-{lab}-4), v{vt}')
    a(f'global_load_dword v{vt+1}, v{vt}, s[{sT}:{sT+1}]')

def gen_A(a):
    vJ, vG, vL = 1, 2, 3
    T = 4
    L, X, ACC = 16, 32, 48
    C1 = 80; MR = C1; MD1 = C1+8; TW = C1+16; MD2 = C1+32
    C2 = 136; M1 = C2; T1 = C2+8; M8 = C2+16; T1i = C2+24; M1i = C2+32
    CO = 176
    AD = 224
    aX, aE1w, aE1r, aZ, aFl, aNon, aDma, aI2, aWw, aWr, aO2w, aO2r, aZ2, aW0, aW1 = \
        AD, AD+1, AD+2, AD+3, AD+4, AD+5, AD+6, AD+8, AD+12, AD+13, AD+15, AD+16, AD+17, AD+18, AD+19
    aSp = AD+20
    fJ, fG = AD+24, AD+25
    TT = AD+26
    E1 = 0; I2 = 36864; O2 = I2 + 32768; WSL = O2 + 34816; MIR = WSL + 33280; E3 = 0
    assert MIR + 1024 <= LDS_BYTES
    acc = lambda tile, part: ACC + 8*tile + 4*part

    a.label('L_A')
    prefetch_code(a, 'L_A', 'L_A_end', TT)
    a(f'''s_load_dwordx2 s[{sX}:{sX+1}], s[0:1], 0
    s_load_dwordx2 s[{sWS}:{sWS+1}], s[0:1], 112
    s_load_dwordx2 s[{sWR}:{sWR+1}], s[0:1], 8
    s_load_dwordx2 s[{sWI}:{sWI+1}], s[0:1], 16
    s_load_dwordx2 s[{sOUT}:{sOUT+1}], s[0:1], 96
    s_mov_b32 s{sX+2}, 4194304
    s_mov_b32 s{sX+3}, 0x20000
    s_mov_b32 s{sWS+2}, {WS_SIZE}
    s_mov_b32 s{sWS+3}, 0x20000
    s_mov_b32 s{sWR+2}, 2101248
    s_mov_b32 s{sWR+3}, 0x20000
    s_mov_b32 s{sWI+2}, 2101248
    s_mov_b32 s{sWI+3}, 0x20000
    s_mov_b32 s{sOUT+2}, 8388608
    s_mov_b32 s{sOUT+3}, 0x20000
    v_lshrrev_b32 v{T}, 6, v0
    v_and_b32 v{vL}, 63, v0
    v_readfirstlane_b32 s{sW}, v{T}
    v_and_b32 v{vJ}, 15, v0
    v_bfe_u32 v{vG}, v0, 4, 2
    s_lshl_b32 s{sM}, s2, 11
    s_add_u32 s{sM+1}, s{sM}, 262144
    s_add_u32 s{sM+2}, s{sM}, 524288
    s_add_u32 s{sM+3}, s{sM}, 786432
    v_lshlrev_b32 v{aX}, 20, v{vG}
    v_lshl_or_b32 v{aX}, v{vJ}, 3, v{aX}
    v_lshl_or_b32 v{aX}, v{T}, 8, v{aX}''')
    xsrc = {}
    for m in range(4):
        for nb in range(2):
            r = L + 4*m + 2*nb
            xsrc[m, nb] = r
            a(f'buffer_load_dwordx2 {vr(r,2)}, v{aX}, {srd(sX)}, s{sM+m} offen offset:{128*nb}')
    stamp(a, 1)
    a(f'v_mov_b32 v{aNon}, {GEN}')
    a(f'buffer_load_dword v{aNon}, v{aNon}, {srd(sWS)}, 0 offen sc1')
    a(f'''s_lshr_b32 s{sSWZ}, s2, 4
    s_and_b32 s{sSWZ}, s{sSWZ}, 2
    s_and_b32 s{sA}, s2, 7
    s_lshr_b32 s{sB}, s2, 3
    s_lshl_b32 s{sBP}, s{sA}, 12
    s_mov_b32 s{sDQ}, 2048
    s_mov_b32 s{sSPEC}, 0
    s_cmp_lg_u32 s{sA}, 0''')
    with a.cond('s_cbranch_scc1'):
        a(f'''s_and_b32 s{sA}, s{sB}, 8
        s_lshl_b32 s{sBP}, s{sA}, 8
        s_and_b32 s{sB}, s{sB}, 7
        s_mov_b32 s{sDQ}, 1024
        s_mov_b32 s{sSPEC}, 1''')
    a(f'''s_lshl_b32 s{sT}, s{sB}, 7
    s_add_u32 s{sBP}, s{sBP}, s{sT}''')
    a(f'v_cvt_f32_u32 v{fJ}, v{vJ}\nv_cvt_f32_u32 v{fG}, v{vG}')
    a(f'''v_lshrrev_b32 v{T}, 1, v{vJ}
    v_cmp_eq_u32 vcc, 1, v{vJ}
    v_cndmask_b32 v{T}, v{T}, 8, vcc
    v_cvt_f32_u32 v{T}, v{T}
    v_and_b32 v{T+1}, 1, v{vJ}
    v_lshlrev_b32 v{T+1}, 31, v{T+1}
    v_cndmask_b32 v{TT+2}, v{T+1}, 0, vcc
    v_mul_f32 v{T+1}, 0x3e800000, v{fG}
    v_mul_f32 v{X}, v{T}, v{T+1}''')
    args4(a, X, T, X, 1/16)
    matrix(a, MR, MR+4, [X+m for m in range(4)], ACC)
    for m in range(8): a(f'v_xor_b32 v{MR+m}, v{TT+2}, v{MR+m}')
    a(f'''v_xor_b32 v{T}, s{sSWZ}, v{vJ}
    v_cvt_f32_u32 v{T}, v{T}
    v_mul_f32 v{X}, v{T}, v{T+1}''')
    args4(a, X, T, X, 1/16)
    matrix(a, MD1, MD1+4, [X+m for m in range(4)], ACC)
    a(f'v_mul_f32 v{T+2}, {fh(1/64)}, v{fG}\nv_mul_f32 v{X}, v{T}, v{T+2}')
    a(f'v_fmamk_f32 v{X+4}, v{T}, {fh(1/512)}, v{X}')
    args4(a, X, T, X, 2/512); args4(a, X+4, T, X+4, 2/512)
    trig4(a, [X+m for m in range(8)], TW)
    a(f'v_mul_f32 v{X}, v{fJ}, v{T+1}')
    a(f'v_fmamk_f32 v{X+4}, v{fJ}, {fh(1/32)}, v{X}')
    args4(a, X, fJ, X, 2/32); args4(a, X+4, fJ, X+4, 2/32)
    matrix(a, MD2, MD2+4, [X+m for m in range(4)], ACC)
    matrix(a, MD2+8, MD2+12, [X+4+m for m in range(4)], ACC+8)
    for m in range(8): a(f'v_xor_b32 v{MD2+16+m}, 0x80008000, v{MD2+8+m}')
    a(f'''v_mul_u32_u24 v{T}, 72, v{vJ}
    s_lshl_b32 s{sT}, s{sW}, 3
    v_mul_u32_u24 v{aE1w}, 9216, v{vG}
    v_add3_u32 v{aE1w}, v{aE1w}, v{T}, s{sT}
    s_mul_i32 s{sT}, s{sW}, 4608
    v_lshl_add_u32 v{aE1r}, v{vG}, 4, v{T}
    v_add_u32 v{aE1r}, s{sT}, v{aE1r}
    s_lshl_b32 s{sT}, s{sW}, 12
    s_lshl_b32 s{sT+1}, s2, 15
    s_add_u32 s{sT}, s{sT}, s{sT+1}
    v_lshlrev_b32 v{aZ}, 6, v{vJ}
    v_lshl_or_b32 v{aZ}, v{vG}, 4, v{aZ}
    v_add_u32 v{aZ}, s{sT}, v{aZ}''')
    for r in range(4): a(f'v_mov_b32 v{aSp+r}, 0')
    a(f's_cmp_lg_u32 s{sW}, 0')
    with a.cond('s_cbranch_scc1'):
        for r in range(4):
            a(f'''v_lshl_or_b32 v{T}, v{vG}, 2, {r}
            v_xor_b32 v{T}, s{sSWZ}, v{T}
            v_lshl_add_u32 v{T}, v{vJ}, 4, v{T}
            v_sub_u32 v{T}, 256, v{T}
            v_and_b32 v{T}, 255, v{T}
            v_xor_b32 v{T}, s{sSWZ}, v{T}
            v_lshlrev_b32 v{T}, 2, v{T}
            v_add_u32 v{aSp+r}, s{sT+1}, v{T}''')
    xt = lambda nb, tp: X + 4*(2*tp + nb)
    for tp in range(2):
        for nb in range(2):
            for h in range(2):
                a(f'v_pk_mov_b32 {vr(xt(nb,tp)+2*h,2)}, {vr(xsrc[2*h,nb],2)}, {vr(xsrc[2*h+1,nb],2)} op_sel:[{tp},{tp}]')
    stamp(a, 2)
    for tp in range(2):
        for nb in range(2):
            for part in range(2):
                a(f'{MF16} {vr(acc(2*tp+nb,part),4)}, {vr(MR+4*part,4)}, {vr(xt(nb,tp),4)}, 0')
    for tp in range(2):
        for r in range(4):
            for nb in range(2):
                a(f'v_cvt_pk_bf16_f32 v{L+8*tp+2*r+nb}, v{acc(2*tp+nb,0)+r}, v{acc(2*tp+nb,1)+r}')
            a(f'ds_write_b64 v{aE1w}, {vr(L+8*tp+2*r,2)} offset:{E1+2304*r+1152*tp}')
    a('s_waitcnt lgkmcnt(0)\ns_barrier')
    for wh in range(2):
        for t in range(2):
            for h in range(2):
                a(f'ds_read_b64 {vr(X+8*wh+4*t+2*h,2)}, v{aE1r} offset:{E1+2304*wh+1152*t+8*h}')
    for tile in range(4):
        for part in range(2):
            a(f'{MF16} {vr(acc(tile,part),4)}, {vr(X+4*tile,4)}, {vr(MD1+4*part,4)}, 0')
    for wh in range(2):
        for t in range(2):
            twiddle(a, X+8*wh+4*t, acc(2*wh+t,0), acc(2*wh+t,1), TW+8*t, T)
        for N in range(2):
            for part in range(2):
                a(f'{MF16} {vr(acc(2*wh+N,part),4)}, {vr(X+8*wh,4)}, {vr(MD2+4*part,4)}, 0')
        for N in range(2):
            for part in range(2):
                a(f'{MF16} {vr(acc(2*wh+N,part),4)}, {vr(X+8*wh+4,4)}, {vr(MD2+8+8*N+4*part,4)}, {vr(acc(2*wh+N,part),4)}')
    def z1_store(wh, N):
        for r in range(4):
            a(f'v_cvt_pk_bf16_f32 v{L+8*wh+4*N+r}, v{acc(2*wh+N,0)+r}, v{acc(2*wh+N,1)+r}')
        a(f'buffer_store_dwordx4 {vr(L+8*wh+4*N,4)}, v{aZ}, {srd(sWS)}, 0 offen offset:{2048*wh+1024*N} sc1')
        a.tag_vm('z1')
    z1_store(0, 0)
    def norm1():
        z1_store(0, 1); z1_store(1, 0); z1_store(1, 1)
    def spec1():
        for wh in range(2):
            if wh: z1_store(1, 0)
            for r in range(4):
                a(f'v_cvt_pk_bf16_f32 v{L+8*wh+4+r}, v{acc(2*wh+1,0)+r}, -v{acc(2*wh+1,1)+r}')
                a(f'buffer_store_dword v{L+8*wh+4+r}, v{aSp+r}, {srd(sWS)}, 0 offen offset:{2048*wh+1024} sc1')
                a.tag_vm('z1')
    a(f's_cmp_eq_u32 s{sW}, 0')
    a.ifelse('s_cbranch_scc1', norm1, spec1)
    stamp(a, 3)
    WL = X
    a(f'''v_lshrrev_b32 v{T}, 2, v0
    v_lshl_add_u32 v{T}, v{T}, 4, s{sA}
    v_sub_u32 v{T+1}, 0, v{T}
    v_and_b32 v{T+1}, 0x7ff, v{T+1}
    v_and_b32 v{T+2}, 3, v0
    v_lshlrev_b32 v{T+2}, 4, v{T+2}
    s_movk_i32 s{sT}, 1026
    v_mad_u32_u24 v{aW0}, v{T}, s{sT}, v{T+2}
    v_mad_u32_u24 v{aW1}, v{T+1}, s{sT}, v{T+2}
    s_lshl_b32 s{sT+1}, s{sB}, 6
    s_sub_u32 s{sT+2}, 962, s{sT+1}''')
    a(f'buffer_load_dwordx4 {vr(WL,4)}, v{aW0}, {srd(sWR)}, s{sT+1} offen')
    a(f'buffer_load_dwordx4 {vr(WL+4,4)}, v{aW0}, {srd(sWI)}, s{sT+1} offen')
    a(f'buffer_load_dwordx4 {vr(WL+8,4)}, v{aW1}, {srd(sWR)}, s{sT+2} offen')
    a(f'buffer_load_dwordx4 {vr(WL+12,4)}, v{aW1}, {srd(sWI)}, s{sT+2} offen')
    a(f'v_readfirstlane_b32 s{sNONCE}, v{aNon}')
    a.wait_vm_tag('z1')
    a('s_barrier')
    a(f's_add_u32 s{sNONCE}, s{sNONCE}, 0x9e3779b9')
    stamp(a, 4)
    SP = C1
    a(f's_cmp_lg_u32 s{sW}, 0')
    with a.cond('s_cbranch_scc1'):
        a(f'''s_mul_i32 s{sT}, s2, {FLS}
        s_add_u32 s{sT}, s{sT}, {FL1}
        v_mov_b32 v{T}, s{sT}
        v_mov_b32 v{T+1}, s{sNONCE}
        s_mov_b64 exec, 1
        buffer_store_dword v{T+1}, v{T}, {srd(sWS)}, 0 offen sc1
        s_mov_b64 exec, -1
        s_cmp_lg_u32 s{sB}, 0''')
        with a.cond('s_cbranch_scc1'):
            a(f'''v_and_b32 v{T}, 1, v{vG}
            v_lshlrev_b32 v{T}, 10, v{T}
            v_lshl_add_u32 v{T}, v{vJ}, 4, v{T}
            v_add_u32 v{T}, s{sA}, v{T}
            s_movk_i32 s{sT}, 1026''')
            for r in range(4):
                a(f'''v_add_u32 v{T+1}, {256*r}, v{T}
                v_sub_u32 v{T+2}, 0, v{T+1}
                v_and_b32 v{T+2}, 0x7ff, v{T+2}
                v_mul_u32_u24 v{T+3+2*r}, s{sT}, v{T+1}
                v_mul_u32_u24 v{T+4+2*r}, s{sT}, v{T+2}''')
                a(f'buffer_load_short_d16_hi v{SP+6*r}, v{T+4+2*r}, {srd(sWR)}, 0 offen')
                a(f'buffer_load_short_d16_hi v{SP+6*r+1}, v{T+4+2*r}, {srd(sWI)}, 0 offen')
                a(f'buffer_load_short_d16_hi v{SP+6*r+2}, v{T+3+2*r}, {srd(sWR)}, 0 offen offset:1024')
                a(f'buffer_load_short_d16_hi v{SP+6*r+3}, v{T+3+2*r}, {srd(sWI)}, 0 offen offset:1024')
                a(f'buffer_load_short_d16_hi v{SP+6*r+4}, v{T+3+2*r}, {srd(sWR)}, 0 offen offset:512')
                a(f'buffer_load_short_d16_hi v{SP+6*r+5}, v{T+3+2*r}, {srd(sWI)}, 0 offen offset:512')
    fK, fS, fF = T, T+1, T+2
    AR = L
    a(f'''v_cvt_f32_u32 v{fF}, s{sA}
    v_mul_f32 v{fF}, {fh(1/16)}, v{fF}
    v_add_f32 v{fK}, v{fJ}, v{fF}
    v_and_b32 v{fS}, 1, v{vG}
    v_lshlrev_b32 v{fS}, 2, v{fS}
    v_cvt_f32_u32 v{fS}, v{fS}
    v_mul_f32 v{T+3}, 0x3e800000, v{fG}
    v_mul_f32 v{AR}, v{fK}, v{T+3}''')
    args4(a, AR, fK, AR, 1/16)
    matrix(a, M1, M1+4, [AR+m for m in range(4)], ACC)
    a(f'v_mul_f32 v{T+3}, {fh(1/128)}, v{fS}\nv_mul_f32 v{AR}, v{fK}, v{T+3}')
    args4(a, AR, fK, AR, 1/128)
    trig4(a, [AR+m for m in range(4)], T1)
    a(f'''v_and_b32 v{T+4}, 7, v{vJ}
    v_cvt_f32_u32 v{T+4}, v{T+4}
    v_mul_f32 v{T+3}, 0x3e000000, v{fS}
    v_mul_f32 v{AR}, v{T+4}, v{T+3}''')
    args4(a, AR, T+4, AR, 1/8)
    matrix(a, M8, M8+4, [AR+m for m in range(4)], ACC)
    a(f'''v_lshrrev_b32 v{T+5}, 3, v{vJ}
    v_lshrrev_b32 v{T+6}, 1, v{vG}
    v_cmp_eq_u32 vcc, v{T+5}, v{T+6}''')
    for m in range(8): a(f'v_cndmask_b32 v{M8+m}, 0, v{M8+m}, vcc')
    a(f'''v_fmamk_f32 v{T+3}, v{fG}, 4.0, v{fF}
    v_mul_f32 v{T+7}, {fh(1/128)}, v{T+3}
    v_mul_f32 v{AR}, v{T+4}, v{T+7}'''.replace('4.0', fh(4.0)))
    args4(a, AR, T+4, AR, 1/128)
    trig4(a, [AR+m for m in range(4)], T1i)
    a(f'v_mul_f32 v{T+7}, {fh(1/16)}, v{T+3}\nv_mul_f32 v{AR}, v{fJ}, v{T+7}')
    args4(a, AR, fJ, AR, 1/16)
    matrix(a, M1i, M1i+4, [AR+m for m in range(4)], ACC)
    a(f'''v_bfe_u32 v{T}, v{vL}, 3, 1
    v_mul_u32_u24 v{T}, s{sDQ}, v{T}
    v_lshl_add_u32 v{T}, v{vG}, 15, v{T}
    v_add_u32 v{T}, s{sBP}, v{T}
    v_and_b32 v{T+1}, 7, v{vL}
    v_lshl_add_u32 v{aZ2}, v{T+1}, 4, v{T}
    v_xor_b32 v{T+1}, v{T+1}, v{vG}
    v_lshl_add_u32 v{aDma}, v{T+1}, 4, v{T}
    v_xor_b32 v{T+1}, 4, v{T+1}
    v_lshl_add_u32 v{aDma+1}, v{T+1}, 4, v{T}''')
    a(f'''v_and_b32 v{T}, 7, v{vJ}
    s_lshr_b32 s{sT}, s{sW}, 1
    v_xor_b32 v{T+1}, s{sT}, v{T}
    v_lshlrev_b32 v{T+1}, 4, v{T+1}
    v_lshl_or_b32 v{T+1}, v{T}, 8, v{T+1}
    v_lshl_or_b32 v{T+1}, v{vG}, 13, v{T+1}
    v_xor_b32 v{T+2}, s{sW}, v{vG}
    v_and_b32 v{T+2}, 1, v{T+2}
    v_lshl_or_b32 v{T+2}, v{T+2}, 1, v{T+5}
    v_lshl_or_b32 v{T+1}, v{T+2}, 2, v{T+1}
    v_add_u32 v{aI2}, {I2}, v{T+1}
    v_add_u32 v{aI2+1}, {I2+128}, v{T+1}
    v_xor_b32 v{T+1}, 64, v{T+1}
    v_add_u32 v{aI2+2}, {I2}, v{T+1}
    v_add_u32 v{aI2+3}, {I2+128}, v{T+1}''')
    a(f'''s_lshr_b32 s{sT}, s{sW}, 2
    s_lshl_b32 s{sT}, s{sT}, 4
    s_and_b32 s{sT+1}, s{sW}, 3
    s_lshl_b32 s{sT+1}, s{sT+1}, 5
    s_add_u32 s{sT}, s{sT}, s{sT+1}
    s_lshl_b32 s{sT}, s{sT}, 2
    s_add_u32 s{sT}, s{sT}, {WSL}
    v_and_b32 v{T}, 3, v{vL}
    v_mul_u32_u24 v{T}, 2080, v{T}
    v_and_b32 v{T+1}, 60, v{vL}
    v_add3_u32 v{aWw}, v{T}, v{T+1}, s{sT}
    v_and_b32 v{T}, 1, v{vG}
    v_lshl_add_u32 v{T}, v{T}, 4, v{vJ}
    v_lshlrev_b32 v{T}, 2, v{T}
    v_lshl_add_u32 v{T+1}, v{T+6}, 1, v{T}
    v_xor_b32 v{T+2}, 2, v{T+1}
    s_mul_i32 s{sT}, s{sW}, 520
    s_add_u32 s{sT+1}, s{sT}, {WSL}
    s_sub_u32 s{sT+2}, {WSL+7*520}, s{sT}
    v_add_u32 v{aWr}, s{sT+1}, v{T+1}
    v_add_u32 v{aWr+1}, s{sT+2}, v{T+2}''')
    a(f'''v_and_b32 v{T}, 7, v{vJ}
    v_lshl_add_u32 v{T}, v{vG}, 5, v{T}
    v_mul_u32_u24 v{T}, 272, v{T}
    v_lshl_add_u32 v{T}, v{T+5}, 3, v{T}
    s_lshl_b32 s{sT}, s{sW}, 4
    s_add_u32 s{sT}, s{sT}, {O2}
    v_add_u32 v{aO2w}, s{sT}, v{T}
    v_mul_u32_u24 v{T}, 272, v{vG}
    v_lshl_add_u32 v{T}, v{vJ}, 4, v{T}
    s_mul_i32 s{sT}, s{sW}, {16*272}
    s_add_u32 s{sT}, s{sT}, {O2}
    v_add_u32 v{aO2r}, s{sT}, v{T}
    v_mul_u32_u24 v{aFl}, {FLS}, v{vL}''')
    SC = 1.0/(2048*512)/2
    TH = C1+24
    a(f'''s_lshl_b32 s{sT}, s{sB}, 5
    s_lshl_b32 s{sT+1}, s{sW}, 1
    s_add_u32 s{sT}, s{sT}, s{sT+1}
    v_add_u32 v{T}, s{sT}, v{T+6}
    v_cvt_f32_u32 v{T}, v{T}
    v_mul_f32 v{T}, {fh(1/1024)}, v{T}
    v_add_f32 v{T+1}, {fh(16/1024)}, v{T}
    v_sin_f32 v{TH}, v{T}
    v_cos_f32 v{TH+1}, v{T}
    v_sin_f32 v{TH+2}, v{T+1}
    v_cos_f32 v{TH+3}, v{T+1}''')
    for k in range(4): a(f'v_mul_f32 v{TH+k}, {fh(SC)}, v{TH+k}')
    a(f's_cmp_lg_u32 s{sW}, 0')
    with a.cond('s_cbranch_scc1'):
        poll(a, FL1, aFl, T)
        a('s_cmp_lg_u32 s2, 0')
        with a.cond('s_cbranch_scc1'):
            a(f'''v_mov_b32 v{T}, {GEN}
            v_mov_b32 v{T+1}, s{sNONCE}
            s_mov_b64 exec, 1
            buffer_store_dword v{T+1}, v{T}, {srd(sWS)}, 0 offen sc1
            s_mov_b64 exec, -1''')
    a('s_barrier')
    stamp(a, 5)
    a(f'''s_lshl_b32 s{sT}, s{sW}, 19
    s_lshl_b32 s{sT+1}, s{sW}, 12
    s_add_u32 s{sT+1}, s{sT+1}, {I2}''')
    for q in range(4):
        a(f's_mov_b32 m0, s{sT+1}')
        a(f'buffer_load_dwordx4 v{aDma+(q&1)}, {srd(sWS)}, s{sT} offen sc1 lds')
        a.tag_vm('dma')
        if q < 3: a(f's_add_u32 s{sT}, s{sT}, {4*32768}\ns_add_u32 s{sT+1}, s{sT+1}, 1024')
    for q in range(4):
        for i in range(4):
            a(f'ds_write_b32 v{aWw}, v{WL+4*q+i} offset:{4*(2080*q+130*i)}')
    a('s_waitcnt lgkmcnt(0)\ns_barrier')
    raw = lambda t, r, q: ACC + 16*t + 4*r + q
    for t in range(2):
        for r in range(4):
            for q in range(4):
                if q < 2: a(f'ds_read_u16_d16_hi v{raw(t,r,q)}, v{aWr} offset:{4*(2080*q+1040*t+32*r)}')
                else: a(f'ds_read_u16_d16_hi v{raw(t,r,q)}, v{aWr+1} offset:{4*(2080*q+1040*(1-t)+32*r)}')
    a(f's_or_b32 s{sT}, s{sW}, s{sB}')
    with a.cond('s_cbranch_scc1'):
        a('s_mov_b32 exec_hi, 0')
        for r in range(4):
            a(f'''v_add_f32 v{raw(0,r,0)}, v{raw(0,r,0)}, v{SP+6*r}
            v_sub_f32 v{raw(0,r,1)}, v{raw(0,r,1)}, v{SP+6*r+1}
            v_add_f32 v{raw(0,r,2)}, v{raw(0,r,2)}, v{SP+6*r+2}
            v_sub_f32 v{raw(0,r,3)}, v{raw(0,r,3)}, v{SP+6*r+3}''')
            for q in range(4): a(f'v_mul_f32 v{raw(0,r,q)}, 0.5, v{raw(0,r,q)}')
        a('s_mov_b64 exec, -1')
    co = lambda t, r, k: CO + 24*t + 6*r + k
    for t in range(2):
        for r in range(4):
            a0, b0, a1, b1 = [raw(t,r,q) for q in range(4)]
            a(f'''v_add_f32 v{T}, v{a0}, v{a1}
            v_sub_f32 v{T+1}, v{b0}, v{b1}
            v_sub_f32 v{T+2}, v{a0}, v{a1}
            v_add_f32 v{T+3}, v{b0}, v{b1}
            v_mul_f32 v{T}, {fh(SC)}, v{T}
            v_mul_f32 v{T+1}, {fh(SC)}, v{T+1}
            v_fma_f32 v{co(t,r,0)}, -v{T+2}, v{TH+2*t}, v{T}
            v_fma_f32 v{co(t,r,1)}, -v{T+3}, v{TH+2*t}, v{T+1}
            v_fma_f32 v{co(t,r,2)}, v{T+2}, v{TH+2*t}, v{T}
            v_fma_f32 v{co(t,r,3)}, v{T+3}, v{TH+2*t}, v{T+1}
            v_mul_f32 v{co(t,r,4)}, v{T+2}, v{TH+2*t+1}
            v_mul_f32 v{co(t,r,5)}, v{T+3}, v{TH+2*t+1}''')
    a(f'''s_or_b32 s{sT}, s{sW}, s{sB}
    s_cselect_b32 s{sSPEC}, 0, s{sSPEC}
    s_cmp_eq_u32 s{sSPEC}, 0''')
    aMir = C1+28
    with a.cond('s_cbranch_scc1'):
        a('s_mov_b32 exec_hi, 0')
        for r in range(4):
            a(f'v_mul_f32 v{co(0,r,2)}, {fh(2*SC)}, v{SP+6*r+4}\nv_mul_f32 v{co(0,r,3)}, {fh(2*SC)}, v{SP+6*r+5}')
        a('s_mov_b64 exec, -1')
        a(f'''v_and_b32 v{T}, 1, v{vG}
        v_lshl_add_u32 v{T}, v{T}, 6, v{vJ}
        v_lshlrev_b32 v{aMir}, 3, v{T}
        v_add_u32 v{aMir}, {MIR}, v{aMir}
        s_cmp_eq_u32 s{sA}, 0
        s_cselect_b32 s{sT}, 0, -1''')
        for r in range(4):
            a(f'''v_add_u32 v{T+1}, {16*r}, v{T}
            v_sub_u32 v{T+1}, s{sT}, v{T+1}
            v_and_b32 v{T+1}, 127, v{T+1}
            v_lshlrev_b32 v{T+1}, 3, v{T+1}
            v_add_u32 v{aMir+1+r}, {MIR}, v{T+1}''')
    a.wait_vm_tag('dma')
    a('s_barrier')
    stamp(a, 6)
    for t in range(2):
        for pq in range(2):
            for h in range(2):
                a(f'ds_read2st64_b32 {vr(X+4*(2*t+pq)+2*h,2)}, v{aI2+2*t+pq} offset0:{16*h} offset1:{16*h+8}')
    for tile in range(4):
        for part in range(2):
            a(f'{MF16} {vr(acc(tile,part),4)}, {vr(X+4*tile,4)}, {vr(M1+4*part,4)}, 0')
    for tile in range(4):
        twiddle(a, X+4*tile, acc(tile,0), acc(tile,1), T1, T)
        for part in range(2):
            a(f'{MF16} {vr(acc(tile,part),4)}, {vr(M8+4*part,4)}, {vr(X+4*tile,4)}, 0')
    def mult(t, YP, YQ):
        Pr, Pi, Qr, Qi = acc(2*t,0), acc(2*t,1), acc(2*t+1,0), acc(2*t+1,1)
        for r0 in (0, 2):
            rs = (r0, r0+1); tm = lambda r, k: T + 4*(r-r0) + k
            for r in rs:
                a(f'''v_mul_f32 v{tm(r,0)}, v{co(t,r,0)}, v{Pr+r}
                v_mul_f32 v{tm(r,1)}, v{co(t,r,0)}, v{Pi+r}
                v_mul_f32 v{tm(r,2)}, v{co(t,r,2)}, v{Qr+r}
                v_mul_f32 v{tm(r,3)}, v{co(t,r,2)}, v{Qi+r}''')
            for r in rs:
                a(f'''v_fma_f32 v{tm(r,0)}, -v{co(t,r,1)}, v{Pi+r}, v{tm(r,0)}
                v_fmac_f32 v{tm(r,1)}, v{co(t,r,1)}, v{Pr+r}
                v_fma_f32 v{tm(r,2)}, -v{co(t,r,3)}, v{Qi+r}, v{tm(r,2)}
                v_fmac_f32 v{tm(r,3)}, v{co(t,r,3)}, v{Qr+r}''')
            for r in rs:
                a(f'''v_fma_f32 v{tm(r,0)}, -v{co(t,r,4)}, v{YP[1]+r}, v{tm(r,0)}
                v_fmac_f32 v{tm(r,1)}, v{co(t,r,4)}, v{YP[0]+r}
                v_fmac_f32 v{tm(r,2)}, v{co(t,r,4)}, v{YQ[1]+r}
                v_fma_f32 v{tm(r,3)}, -v{co(t,r,4)}, v{YQ[0]+r}, v{tm(r,3)}''')
            for r in rs:
                a(f'''v_fma_f32 v{tm(r,0)}, -v{co(t,r,5)}, v{YP[0]+r}, v{tm(r,0)}
                v_fma_f32 v{tm(r,1)}, -v{co(t,r,5)}, v{YP[1]+r}, v{tm(r,1)}
                v_fmac_f32 v{tm(r,2)}, v{co(t,r,5)}, v{YQ[0]+r}
                v_fmac_f32 v{tm(r,3)}, v{co(t,r,5)}, v{YQ[1]+r}''')
            for r in rs:
                a(f'v_cvt_pk_bf16_f32 v{X+8*t+r}, v{tm(r,1)}, v{tm(r,0)}')
                a(f'v_cvt_pk_bf16_f32 v{X+8*t+4+r}, v{tm(r,3)}, v{tm(r,2)}')
    def mult_norm(t): mult(t, (acc(2*t+1,0), acc(2*t+1,1)), (acc(2*t,0), acc(2*t,1)))
    def mult_spec():
        YP, YQ = L, L+8
        a('s_mov_b32 exec_hi, 0')
        for r in range(4):
            a(f'ds_write2_b32 v{aMir}, v{acc(0,0)+r}, v{acc(0,1)+r} offset0:{32*r} offset1:{32*r+1}')
        for r in range(4):
            a(f'ds_read_b64 {vr(T+2*r,2)}, v{aMir+1+r}')
        a('s_mov_b64 exec, -1')
        for k in range(8):
            a(f'v_mov_b32 v{YP+k}, v{acc(1,0)+k}\nv_mov_b32 v{YQ+k}, v{acc(0,0)+k}')
        a('s_mov_b32 exec_hi, 0')
        for r in range(4):
            a(f'v_mov_b32 v{YP+r}, v{T+2*r}\nv_xor_b32 v{YP+4+r}, 0x80000000, v{T+2*r+1}')
        for k in range(8): a(f'v_mov_b32 v{YQ+k}, 0')
        a('s_mov_b64 exec, -1')
        mult(0, (YP, YP+4), (YQ, YQ+4))
    def istage1(t):
        for tile in (2*t, 2*t+1):
            for part in range(2):
                a(f'{MF16} {vr(acc(tile,part),4)}, {vr(X+4*tile,4)}, {vr(M8+4*part,4)}, 0')
    a(f's_cmp_lg_u32 s{sSPEC}, 0')
    a.ifelse('s_cbranch_scc1', lambda: mult_norm(0), mult_spec)
    istage1(0)
    mult_norm(1)
    istage1(1)
    for tile in range(4):
        twiddle(a, X+4*tile, acc(tile,0), acc(tile,1), T1i, T)
        for part in range(2):
            a(f'{MF16} {vr(acc(tile,part),4)}, {vr(M1i+4*part,4)}, {vr(X+4*tile,4)}, 0')
    for pq in range(2):
        for r in range(4):
            for t in range(2):
                a(f'v_cvt_pk_bf16_f32 v{L+8*pq+2*r+t}, v{acc(2*t+pq,0)+r}, v{acc(2*t+pq,1)+r}')
            a(f'ds_write_b64 v{aO2w}, {vr(L+8*pq+2*r,2)} offset:{8*272*r+128*pq}')
    a(f's_lshl_b32 s{sT}, s{sW}, 19\ns_add_u32 s{sT}, s{sT}, {Z2}')
    a('s_waitcnt lgkmcnt(0)\ns_barrier')
    for q in range(4):
        a(f'ds_read_b128 {vr(X+4*q,4)}, v{aO2r} offset:{4*272*q}')
    for q in range(4):
        a(f'buffer_store_dwordx4 {vr(X+4*q,4)}, v{aZ2}, {srd(sWS)}, s{sT} offen sc1')
        if q < 3: a(f's_add_u32 s{sT}, s{sT}, {4*32768}')
    stamp(a, 7)
    a('s_waitcnt vmcnt(0)\ns_barrier')
    stamp(a, 8)
    a(f's_cmp_lg_u32 s{sW}, 0')
    with a.cond('s_cbranch_scc1'):
        a(f'''s_mul_i32 s{sT}, s2, {FLS}
        s_add_u32 s{sT}, s{sT}, {FL2}
        v_mov_b32 v{T}, s{sT}
        v_mov_b32 v{T+1}, s{sNONCE}
        s_mov_b64 exec, 1
        buffer_store_dword v{T+1}, v{T}, {srd(sWS)}, 0 offen sc1
        s_mov_b64 exec, -1''')
    a(f'''v_add_f32 v{T}, v{fJ}, v{fJ}
    v_add_f32 v{T+1}, 1.0, v{T}
    v_mul_f32 v{T+2}, 0x3e000000, v{fG}
    v_mul_f32 v{AR}, v{T}, v{T+2}
    v_mul_f32 v{AR+4}, v{T+1}, v{T+2}''')
    args4(a, AR, T, AR, 1/32); args4(a, AR+4, T+1, AR+4, 1/32)
    matrix(a, MD2, MD2+4, [AR+m for m in range(4)], ACC)
    matrix(a, MD2+8, MD2+12, [AR+4+m for m in range(4)], ACC+8)
    for m in range(8): a(f'v_xor_b32 v{MD2+16+m}, 0x80008000, v{MD2+8+m}')
    a(f'''v_mul_f32 v{T+2}, {fh(1/128)}, v{fG}
    v_mul_f32 v{AR}, v{T}, v{T+2}
    v_mul_f32 v{AR+4}, v{T+1}, v{T+2}''')
    args4(a, AR, T, AR, 1/512); args4(a, AR+4, T+1, AR+4, 1/512)
    trig4(a, [AR+m for m in range(8)], TW)
    a(f'v_mul_f32 v{T+2}, 0x3e800000, v{fG}\nv_mul_f32 v{AR}, v{fJ}, v{T+2}')
    args4(a, AR, fJ, AR, 1/16)
    matrix(a, MD1, MD1+4, [AR+m for m in range(4)], ACC)
    a(f'''v_mul_f32 v{T+2}, 0x3e000000, v{fG}
    v_mul_f32 v{AR}, v{fJ}, v{T+2}
    v_fmamk_f32 v{AR+2}, v{fJ}, {fh(1/16)}, v{AR}
    v_mul_f32 v{T+3}, 0.5, v{fJ}
    v_cmp_eq_u32 vcc, 0, v{vG}
    v_cndmask_b32 v{AR+1}, v{AR}, v{T+3}, vcc
    v_mov_b32 v{T+4}, 0x80008000
    v_cndmask_b32 v{T+4}, v{T+4}, 0, vcc''')
    matrix(a, MR+4, MR, [AR, AR+1, AR+2], ACC)
    a(f'''v_mov_b32 v{MR+3}, v{MR+2}
    v_xor_b32 v{MR+7}, 0x80008000, v{MR+6}
    v_xor_b32 v{MR+5}, v{T+4}, v{MR+5}''')
    aZ3, aE3w, aE3r, aOut = aX, aE1w, aE1r, aZ
    a(f'''s_lshl_b32 s{sT}, s{sW}, 12
    s_lshl_b32 s{sT+1}, s2, 15
    s_add_u32 s{sT+1}, s{sT+1}, {Z2}
    s_add_u32 s{sT}, s{sT}, s{sT+1}
    v_lshlrev_b32 v{T}, 8, v{vG}
    v_lshl_add_u32 v{T}, v{vJ}, 3, v{T}
    v_add_u32 v{aZ3}, s{sT}, v{T}
    v_mul_u32_u24 v{T}, {4*2312}, v{vG}
    v_mul_u32_u24 v{T+1}, 72, v{vJ}
    s_lshl_b32 s{sT}, s{sW}, 3
    v_add3_u32 v{aE3w}, v{T}, v{T+1}, s{sT}
    v_lshrrev_b32 v{T}, 3, v{vJ}
    v_mul_u32_u24 v{T}, 2312, v{T}
    v_and_b32 v{T+1}, 7, v{vJ}
    v_mul_u32_u24 v{T+1}, 144, v{T+1}
    v_lshl_add_u32 v{T+1}, v{vG}, 4, v{T+1}
    s_mul_i32 s{sT}, s{sW}, {2*2312}
    v_add3_u32 v{aE3r}, v{T}, v{T+1}, s{sT}
    s_lshl_b32 s{sT}, s{sW}, 8
    v_lshlrev_b32 v{T}, 21, v{vG}
    v_lshl_add_u32 v{T}, v{vJ}, 4, v{T}
    v_add_u32 v{aOut}, s{sT}, v{T}
    s_lshl_b32 s{sM}, s2, 12
    s_add_u32 s{sM+1}, s{sM}, {128*4096}
    s_add_u32 s{sM+2}, s{sM}, {2*128*4096}
    s_add_u32 s{sM+3}, s{sM}, {3*128*4096}
    s_cmp_lg_u32 s{sW}, 0''')
    with a.cond('s_cbranch_scc1'):
        for m in range(4):
            a(f'''v_lshl_or_b32 v{T}, v{vG}, 2, {m}
            v_lshl_add_u32 v{T}, v{T}, 4, v{vJ}
            v_sub_u32 v{T}, 256, v{T}
            v_and_b32 v{T+1}, 0xe0, v{T}
            v_and_b32 v{T+2}, 15, v{T}
            v_lshl_or_b32 v{T+1}, v{T+2}, 1, v{T+1}
            v_bfe_u32 v{T+2}, v{T}, 4, 1
            v_or_b32 v{T+1}, v{T+1}, v{T+2}
            v_lshlrev_b32 v{T+1}, 2, v{T+1}
            v_add_u32 v{aSp+m}, s{sT+1}, v{T+1}''')
        poll(a, FL2, aFl, T)
    a('s_barrier')
    stamp(a, 9)
    def ld3(wh, t):
        for y in range(2):
            a(f'buffer_load_dwordx2 {vr(X+8*wh+4*t+2*y,2)}, v{aZ3}, {srd(sWS)}, 0 offen offset:{2048*wh+1024*t+128*y} sc1')
    def norm3():
        for wh in range(2):
            ld3(wh, 0); ld3(wh, 1)
    def spec3():
        for wh in range(2):
            ld3(wh, 0)
            for m in range(4):
                a(f'buffer_load_dword v{X+8*wh+4+m}, v{aSp+m}, {srd(sWS)}, 0 offen offset:{2048*wh+1024} sc1')
        for wh in range(2):
            for m in range(4): a(f'v_xor_b32 v{X+8*wh+4+m}, 0x8000, v{X+8*wh+4+m}')
    a(f's_cmp_eq_u32 s{sW}, 0')
    a.ifelse('s_cbranch_scc1', norm3, spec3)
    for wh in range(2):
        for N in range(2):
            for part in range(2):
                a(f'{MF16} {vr(acc(2*wh+N,part),4)}, {vr(X+8*wh,4)}, {vr(MD2+8*N+4*part,4)}, 0')
        if wh == 0: stamp(a, 10)
        for N in range(2):
            for part in range(2):
                a(f'{MF16} {vr(acc(2*wh+N,part),4)}, {vr(X+8*wh+4,4)}, {vr(MD2+16*N+4*part,4)}, {vr(acc(2*wh+N,part),4)}')
    for tile in range(4):
        twiddle(a, L+4*tile, acc(tile,0), acc(tile,1), TW+8*(tile&1), T)
        for part in range(2):
            a(f'{MF16} {vr(acc(tile,part),4)}, {vr(MD1+4*part,4)}, {vr(L+4*tile,4)}, 0')
    for N in range(2):
        for r in range(4):
            for wh in range(2):
                a(f'v_cvt_pk_bf16_f32 v{X+8*N+2*r+wh}, v{acc(2*wh+N,0)+r}, v{acc(2*wh+N,1)+r}')
            a(f'ds_write_b64 v{aE3w}, {vr(X+8*N+2*r,2)} offset:{E3+2312*r+1152*N}')
    a('s_waitcnt lgkmcnt(0)\ns_barrier')
    for t in range(4):
        for h in range(2):
            a(f'ds_read_b64 {vr(L+4*t+2*h,2)}, v{aE3r} offset:{E3+1152*(t&1)+72*(t>>1)+8*h}')
    for t in range(4):
        for part in range(2):
            a(f'{MF16} {vr(acc(t,part),4)}, {vr(MR+4*part,4)}, {vr(L+4*t,4)}, 0')
    for r in range(4):
        for t in range(4):
            a(f'v_cvt_pk_bf16_f32 v{X+4*r+t}, v{acc(t,0)+r}, v{acc(t,1)+r}')
        a(f'buffer_store_dwordx4 {vr(X+4*r,4)}, v{aOut}, {srd(sOUT)}, s{sM+r} offen')
    stamp(a, 11)
    if OPT['stamps']:
        a('s_waitcnt vmcnt(0)')
        stamp(a, 12)
        stamps_out(a, 13, T)
    a('s_endpgm')
    a.label('L_A_end')
    a.reset_counters()

P_ROWS = list(range(9)) + [256,258,260,262,264] + [512,516,520,768,772,776] + [1024,1032,1280,1288,1536,1544,1792,1800]
def d_rows():
    h0 = list(range(9)) + [512,516,520] + [1024,1032] + [1536,1544]
    h1 = [256,256,258,260,260,260,262,264,264] + [768,772,776] + [1280,1288] + [1792,1800]
    return h0, h1
def place_rows():
    h0, h1 = d_rows()
    row = lambda i: (h0, h1)[(i >> 2) & 1][4*(i >> 3) + (i & 3)]
    G1 = {row(i) for i in itertools.chain(range(0,4), range(12,16), range(20,28))}
    G2 = {row(i) for i in itertools.chain(range(4,12), range(16,20), range(28,32))}
    both = sorted(G1 & G2); o1 = sorted(G1 - G2); o2 = sorted(G2 - G1)
    phys = {}
    single = [44, 45, 46, 47]
    for l0 in both: phys[l0] = single.pop(0)
    pair = list(range(12))
    while o1 and o2 and pair:
        r = pair.pop(0); phys[o1.pop(0)] = 32 + r; phys[o2.pop(0)] = 48 + r
    free = single + [32 + r for r in pair]
    for l0 in o1 + o2: phys[l0] = free.pop(0)
    assert sorted(phys) == sorted(P_ROWS) and len(set(phys.values())) == len(phys) and max(phys.values()) < 60
    for G in (G1, G2): assert len({phys[x] % 16 for x in G}) == len(G)
    return phys, [phys[row(i)] for i in range(32)]

def gen_B(a):
    vL, vJ, vG, vJ32 = 1, 2, 3, 4
    T = 5
    UL = 16
    PR = 32
    D = 40
    FR = 56
    W_ = 120
    ACC = 160
    BAND = 192
    GA = 200
    AD = 232
    aTA, aTB, aKw, aKe, aK3z, aK3w, aUw, aUz, aKA, aUB, aK3r, aSw, aSr, aOut, mTop, mBot = range(AD, AD+16)
    vDT, vDS = 248, 249
    KC = 64; KP = 2240; KW = 4*KP; K3 = KC + 8*KW; U = K3 + 8*1536; UP = 4608; ST = U + 8*UP; SP_ = 2112; STB = 8*SP_
    assert ST + 2*STB <= LDS_BYTES, ST + 2*STB
    TP = 272
    sP = 28 + 12
    sD0 = 56; sSE, sSO = 57, 58; sH = 59
    phys, rowmap = place_rows()

    a.label('L_B')
    prefetch_code(a, 'L_B', 'L_B_end', 250)
    a(f'''s_load_dwordx4 s[{sP}:{sP+3}], s[0:1], 32
    s_load_dwordx4 s[{sP+4}:{sP+7}], s[0:1], 48
    s_load_dwordx4 s[{sP+8}:{sP+11}], s[0:1], 64
    s_load_dwordx4 s[{sP+12}:{sP+15}], s[0:1], 80
    s_load_dwordx2 s[{sX}:{sX+1}], s[0:1], 24
    s_load_dwordx2 s[{sOUT}:{sOUT+1}], s[0:1], 96
    s_load_dwordx2 s[{sWS}:{sWS+1}], s[0:1], 112
    s_mov_b32 s{sWS+2}, {WS_SIZE}
    s_mov_b32 s{sWS+3}, 0x20000
    s_mov_b32 s{sX+2}, 4194304
    s_mov_b32 s{sX+3}, 0x20000
    s_mov_b32 s{sOUT+2}, 8388608
    s_mov_b32 s{sOUT+3}, 0x20000
    v_lshrrev_b32 v{T+2}, 6, v0
    v_and_b32 v{vL}, 63, v0
    v_readfirstlane_b32 s{sW}, v{T+2}
    v_and_b32 v{vJ}, 15, v0
    v_bfe_u32 v{vG}, v0, 4, 2
    v_and_b32 v{vJ32}, 31, v0
    s_and_b32 s{sT}, s2, 7
    s_lshl_b32 s{sT}, s{sT}, 7
    s_bfe_u32 s{sT+1}, s2, 0x40003
    s_lshl_b32 s{sT+2}, s{sT+1}, 3
    s_add_u32 s{sD0}, s{sT}, s{sT+2}
    s_add_u32 s{sT}, s{sD0}, s{sW}
    s_lshl_b32 s{sT+2}, s{sT}, 8
    s_lshl_b32 s{sT}, s{sT}, 1
    v_lshl_add_u32 v{T+2}, v{vL}, 2, s{sT+2}
    v_mov_b32 v{T+3}, s{sT}
    s_and_b32 s{sT+1}, s{sT+1}, 7
    s_lshl_b32 s{sT+1}, s{sT+1}, 6
    v_add_u32 v{T+4}, s{sT+1}, v0
    v_and_b32 v{T+4}, 0x1ff, v{T+4}
    s_lshl_b32 s{sT}, s{sD0}, 1
    v_lshl_add_u32 v{T+5}, v{T+4}, 12, s{sT}
    s_mov_b32 s{sH}, 0x200000''')
    a(f'global_load_short_d16_hi v{PR+6}, v{T+3}, s[{sP+12}:{sP+13}]')
    for k in range(6):
        a(f'global_load_dword v{PR+k}, v{T+2}, s[{sP+2*k}:{sP+2*k+1}]')
    a(f'global_load_short_d16_hi v{vDS}, v{T+3}, s[{sP+14}:{sP+15}]')
    for hf in range(2):
        for par in range(2):
            so = f's{sH}' if hf else '0'
            a(f'buffer_load_dwordx4 {vr(UL+8*hf+4*par,4)}, v{T+5}, {srd(sX)}, {so} offen offset:{2048*par}')
    stamp(a, 1)
    a(f'''v_lshlrev_b32 v{aUw}, 2, v{T+4}
    v_add_u32 v{aUw}, {U+512}, v{aUw}
    s_mul_i32 s{sT}, s{sW}, {UP}
    s_add_u32 s{sT}, s{sT}, {U}
    v_lshl_add_u32 v{aUz}, v{vL}, 3, s{sT}
    v_lshlrev_b32 v{T}, 4, v{vG}
    v_lshl_add_u32 v{T}, v{vJ}, 5, v{T}
    v_add_u32 v{aUB}, s{sT}, v{T}
    s_lshl_b32 s{sT}, s{sW}, 14
    s_mov_b32 m0, s{sT}
    v_lshrrev_b32 v{T+1}, 5, v{vL}
    v_lshl_add_u32 v{T+2}, v{T+1}, 4, s{sT}
    v_mul_u32_u24 v{aTB}, {TP}, v{vJ32}
    v_add_u32 v{aTB}, v{aTB}, v{T+2}''')
    words = [sum((rowmap[4*k+b]) << (8*b) for b in range(4)) for k in range(8)]
    a(f'v_lshrrev_b32 v{T+3}, 2, v{vJ32}\nv_mov_b32 v{T+4}, {hex(words[0])}')
    for k in range(1, 8):
        a(f'v_cmp_eq_u32 vcc, {k}, v{T+3}\nv_mov_b32 v{T+5}, {hex(words[k])}\nv_cndmask_b32 v{T+4}, v{T+4}, v{T+5}, vcc')
    a(f'''v_and_b32 v{T+3}, 3, v{vL}
    v_lshlrev_b32 v{T+5}, 3, v{T+3}
    v_bfe_u32 v{T+4}, v{T+4}, v{T+5}, 8
    v_mul_u32_u24 v{aTA}, {TP}, v{T+4}
    v_add_u32 v{aTA}, v{aTA}, v{T+2}''')
    a(f'''s_mul_i32 s{sT}, s{sW}, {KW}
    s_add_u32 s{sT}, s{sT}, {KC}
    v_lshlrev_b32 v{T+4}, 9, v{T+1}
    v_lshl_add_u32 v{T+4}, v{vJ32}, 4, v{T+4}
    v_add_u32 v{aKw}, s{sT}, v{T+4}
    v_mul_u32_u24 v{T+4}, {KP}, v{vG}
    v_lshl_add_u32 v{T+4}, v{vJ}, 2, v{T+4}
    v_add_u32 v{aKe}, s{sT}, v{T+4}
    v_bfe_u32 v{T+5}, v{vL}, 2, 2
    v_mul_u32_u24 v{T+4}, {KP}, v{T+5}
    v_lshl_add_u32 v{T+4}, v{T+3}, 3, v{T+4}
    v_lshlrev_b32 v{T+6}, 4, v{vG}
    v_sub_u32 v{T+4}, v{T+4}, v{T+6}
    v_add_u32 v{aKA}, s{sT}, v{T+4}
    s_mul_i32 s{sT}, s{sW}, 1536
    s_add_u32 s{sT}, s{sT}, {K3}
    v_lshrrev_b32 v{T+4}, 3, v{vL}
    v_mul_u32_u24 v{T+4}, 192, v{T+4}
    v_and_b32 v{T+6}, 7, v{vL}
    v_lshl_add_u32 v{T+4}, v{T+6}, 3, v{T+4}
    v_add_u32 v{aK3z}, s{sT}, v{T+4}
    v_lshlrev_b32 v{T+4}, 5, v{T+1}
    v_and_b32 v{T+6}, 30, v{vL}
    v_add3_u32 v{aK3w}, v{T+4}, v{T+6}, s{sT}
    v_mul_u32_u24 v{T+4}, 192, v{T+5}
    v_lshl_add_u32 v{T+4}, v{T+3}, 3, v{T+4}
    v_lshlrev_b32 v{T+6}, 3, v{vG}
    v_sub_u32 v{T+4}, v{T+4}, v{T+6}
    v_add_u32 v{aK3r}, s{sT}, v{T+4}
    s_mul_i32 s{sT}, s{sW}, {SP_}
    s_add_u32 s{sT}, s{sT}, {ST}
    v_lshlrev_b32 v{T+4}, 5, v{vJ}
    v_lshl_add_u32 v{T+4}, v{vG}, 3, v{T+4}
    v_add_u32 v{aSw}, s{sT}, v{T+4}
    s_lshl_b32 s{sT}, s{sW}, 8
    s_add_u32 s{sT}, s{sT}, {ST}
    v_mul_u32_u24 v{T+4}, {SP_}, v{T+5}
    v_lshl_add_u32 v{T+4}, v{T+3}, 3, v{T+4}
    v_lshl_add_u32 v{T+4}, v{vG}, 5, v{T+4}
    v_add_u32 v{aSr}, s{sT}, v{T+4}
    s_lshl_b32 s{sT}, s{sW}, 19
    s_lshl_b32 s{sT+1}, s{sD0}, 1
    s_add_u32 s{sT}, s{sT}, s{sT+1}
    s_add_u32 s{sT}, s{sT}, 2048
    v_lshl_add_u32 v{aOut}, v{vL}, 12, s{sT}
    s_mov_b32 s{sSE}, 0x05040100
    s_mov_b32 s{sSO}, 0x07060302''')
    a(f'''v_lshlrev_b32 v{T+4}, 1, v{vJ}
    v_sub_u32 v{T+4}, v{T+4}, v{vG}
    v_cmp_ge_i32 vcc, 4, v{T+4}
    v_mov_b32 v{T+6}, 0xffff
    v_cndmask_b32 v{mTop}, 0, v{T+6}, vcc
    v_cmp_ge_i32 vcc, 3, v{T+4}
    v_cndmask_b32 v{mTop}, v{mTop}, -1, vcc
    v_cmp_eq_u32 vcc, 11, v{T+4}
    v_mov_b32 v{T+6}, 0xffff0000
    v_cndmask_b32 v{mBot}, 0, v{T+6}, vcc''')
    for p, (msk, sh) in enumerate(((0x1ff, 4), (0x7f, 5))):
        a(f'''v_add_u32 v{T+4}, {sh}, v{vJ}
        v_mov_b32 v{T+6}, {msk}
        v_lshlrev_b32 v{T+4}, v{T+4}, v{T+6}
        v_lshlrev_b32 v{T+6}, 3, v{vG}
        v_lshrrev_b32 v{T+4}, v{T+6}, v{T+4}''')
        for m in range(4):
            a(f'''v_bfe_i32 v{T+6}, v{T+4}, {2*m}, 1
            v_bfe_i32 v{T+7}, v{T+4}, {2*m+1}, 1
            v_and_b32 v{T+6}, 0x3f80, v{T+6}
            v_and_b32 v{T+7}, 0x3f800000, v{T+7}
            v_or_b32 v{BAND+4*p+m}, v{T+6}, v{T+7}''')
    L2E = math.log2(math.e)
    hi = struct.unpack('<f', struct.pack('<f', L2E))[0]; lo = L2E - hi
    a(f'''v_mul_f32 v{T}, {fh(hi)}, v{PR+6}
    v_mov_b32 v{T+2}, {fh(hi)}
    v_fma_f32 v{T+1}, v{PR+6}, v{T+2}, -v{T}
    v_fmamk_f32 v{T+1}, v{PR+6}, {fh(lo)}, v{T+1}
    v_exp_f32 v{T}, v{T}
    v_mul_f32 v{T+1}, {fh(math.log(2))}, v{T+1}
    v_fmac_f32 v{T}, v{T}, v{T+1}
    v_cvt_pk_bf16_f32 v{T}, v{T}, v{T}
    v_and_b32 v{vDT}, 0xffff0000, v{T}''')
    stamp(a, 2)

    def kpass(p):
        o = []
        e = o.append
        R = W_
        Ar, Ai, Br, Bi, Cr, Ci = range(R, R+6)
        for k in range(6):
            if p == 0: e(f'v_lshlrev_b32 v{R+k}, 16, v{PR+k}')
            else: e(f'v_and_b32 v{R+k}, 0xffff0000, v{PR+k}')
        for k in range(4): e(f'v_mul_f32 v{R+k}, v{vDT}, v{R+k}')
        e(f'v_mul_f32 v{Ar}, {fh(L2E)}, v{Ar}')
        e(f'v_mul_f32 v{Ai}, {fh(1/(2*math.pi))}, v{Ai}')
        w1, w8, w128, w256, w2, w4, c = [R+6+2*i for i in range(7)]
        tm = R+20
        ls = ((w8, 8), (w128, 128), (w1, 1), (w256, 256))
        for i, (w, l) in enumerate(ls):
            if l == 1:
                e(f'v_exp_f32 v{tm+3*i}, v{Ar}'); e(f'v_fract_f32 v{tm+3*i+1}, v{Ai}')
            else:
                e(f'v_mul_f32 v{tm+3*i}, {fh(l)}, v{Ar}'); e(f'v_mul_f32 v{tm+3*i+1}, {fh(l)}, v{Ai}')
                e(f'v_exp_f32 v{tm+3*i}, v{tm+3*i}'); e(f'v_fract_f32 v{tm+3*i+1}, v{tm+3*i+1}')
        e(f'v_mul_f32 v{c}, v{Cr}, v{Br}'); e(f'v_mul_f32 v{c+1}, v{Cr}, v{Bi}')
        for i, (w, l) in enumerate(ls):
            e(f'v_cos_f32 v{w}, v{tm+3*i+1}'); e(f'v_sin_f32 v{w+1}, v{tm+3*i+1}')
        e(f'v_fma_f32 v{c}, -v{Ci}, v{Bi}, v{c}'); e(f'v_fmac_f32 v{c+1}, v{Ci}, v{Br}')
        for i, (w, l) in enumerate(ls):
            e(f'v_mul_f32 v{w}, v{w}, v{tm+3*i}'); e(f'v_mul_f32 v{w+1}, v{w+1}, v{tm+3*i}')
        cv = [T+k for k in range(8)]; cvi = [0, 0]
        def put(row, re, im, neg):
            d = cv[2*cvi[0] + (cvi[1] & 1)]; cvi[1] += 1
            return [f'v_cvt_pk_bf16_f32 v{d}, v{re}, {"-" if neg else ""}v{im}', f'ds_write_addtid_b32 v{d} offset:{row*TP}']
        def cmul(d, x, y):
            return [f'v_mul_f32 v{d}, v{x}, v{y}', f'v_mul_f32 v{d+1}, v{x}, v{y+1}',
                    f'v_fma_f32 v{d}, -v{x+1}, v{y+1}, v{d}', f'v_fmac_f32 v{d+1}, v{x+1}, v{y}']
        def sq(d, x):
            return [f'v_mul_f32 v{d}, v{x}, v{x}', f'v_add_f32 v{d+1}, v{x}, v{x}',
                    f'v_fma_f32 v{d}, -v{x+1}, v{x+1}, v{d}', f'v_mul_f32 v{d+1}, v{d+1}, v{x+1}']
        qa = [tm, tm+2]; qb = [tm+4, tm+6]; pa = [tm+8, tm+10]; pb = [R, R+2]; pc = [R+4, tm+12]
        chA = [[f'v_mov_b32 v{cv[1]}, 0x3f80', f'ds_write_addtid_b32 v{cv[1]} offset:0'] + put(1, w8, w8+1, 0)]
        cur = w8
        for j in range(2, 16):
            d = qa[j & 1]; chA.append(cmul(d, cur, w8) + put(j, d, d+1, 0)); cur = d
        cvi[0] = 1
        chB = [put(16, w128, w128+1, 0)]; cur = w128
        for j in range(17, 32):
            d = qb[j & 1]; chB.append(cmul(d, cur, w8) + put(j, d, d+1, 0)); cur = d
        cvi[0] = 2
        chC = [put(phys[0], c, c+1, 1), sq(w2, w1), sq(w4, w2)]; cur = c
        for l in range(1, 9):
            d = pa[l & 1]; chC.append(cmul(d, cur, w1) + put(phys[l], d, d+1, 1)); cur = d
        cvi[0] = 3
        chD = []; cur = c
        for k in range(1, 8):
            d = pb[k & 1]; chD.append(cmul(d, cur, w256) + put(phys[256*k], d, d+1, 1)); cur = d
            if k == 1: br = [(w2, 258), (w2, 260), (w2, 262), (w2, 264)]
            elif k < 4: br = [(w4, 256*k+4), (w4, 256*k+8)]
            else: br = [(w8, 256*k+8)]
            c2 = d
            for n, (w, l) in enumerate(br):
                d2 = pc[n & 1]; chD.append(cmul(d2, c2, w) + put(phys[l], d2, d2+1, 1)); c2 = d2
        for st in chC[:3]: o += st
        chains = [chA, chB, chC[3:], chD]
        order = []
        idx = [0]*4; lens = [len(x) for x in chains]
        while any(idx[i] < lens[i] for i in range(4)):
            cand = sorted([i for i in range(4) if idx[i] < lens[i]], key=lambda i: -(lens[i]-idx[i]))[:2]
            steps = [chains[i][idx[i]] for i in cand]
            for i in cand: idx[i] += 1
            for tup in itertools.zip_longest(*steps):
                o += [x for x in tup if x]
        return o
    def treads():
        for s in range(8):
            a(f'ds_read_b128 {vr(FR+8*s,4)}, v{aTA} offset:{32*s}')
            a(f'ds_read_b128 {vr(FR+8*s+4,4)}, v{aTB} offset:{32*s}')
    def kmf(s, first):
        return f'{MF32} {vr(D,16)}, {vr(FR+8*s,4)}, {vr(FR+8*s+4,4)}, {"0" if first else vr(D,16)}'
    for x in kpass(0): a(x)
    treads()
    p2 = kpass(1)
    pos = {30 + 12*s: s for s in range(8)}
    for k, x in enumerate(p2):
        if k in pos: a(kmf(pos[k], pos[k] == 0))
        a(x)
    treads()
    stamp(a, 3)
    for s in range(8): a(kmf(s, False))
    a('s_barrier')
    a('v_mov_b32 v6, 0\nv_mov_b32 v7, 0')
    a(f'ds_write_b64 v{aUz}, v[6:7]')
    a(f'ds_write_b64 v{aK3z}, v[6:7]')
    def uwrite(hf):
        for c in range(8):
            d = W_ + c
            a(f'v_perm_b32 v{d}, v{UL+8*hf+4+(c>>1)}, v{UL+8*hf+(c>>1)}, s{sSO if c&1 else sSE}')
            a(f'ds_write_b32 v{aUw}, v{d} offset:{UP*c+2048*hf}')
    a('s_mov_b64 exec, 1')
    a(f'v_add_f32 v{D}, v{D}, v{vDS}')
    a('s_mov_b64 exec, -1')
    EV, OD = FR, FR+8
    pk = lambda d, x, y: a(f'v_cvt_pk_bf16_f32 v{d}, v{D+x}, v{D+y}')
    pk(T+3, 0, 0); pk(T+4, 12, 12)
    a(f'v_readlane_b32 s{sT}, v{T+3}, 0\nv_readlane_b32 s{sT+1}, v{T+4}, 0')
    for m in range(4): pk(EV+m, 2*m, 2*m+1)
    for m in range(4): pk(OD+m, 2*m+1, 2*m+2)
    a(f'v_and_b32 v{T+3}, s{sT}, v{mBot}\nv_and_b32 v{T+4}, s{sT+1}, v{mTop}')
    a(f'ds_write_b32 v{aKe}, v{T+3} offset:8')
    a(f'ds_write_b32 v{aKe}, v{T+4} offset:{2*(1024+16)}')
    for m, (x, y) in enumerate(((9,9),(9,10),(10,10),(11,11))): pk(EV+4+m, x, y)
    for m, (x, y) in enumerate(((9,9),(10,10),(10,11),(11,11))): pk(OD+4+m, x, y)
    for sl in range(2):
        b = 32 + 1024*sl
        a(f'ds_write_b128 v{aKw}, {vr(EV+4*sl,4)} offset:{b}')
        for h in range(2):
            a(f'ds_write_b64 v{aKw}, {vr(OD+4*sl+2*h,2)} offset:{3*KP+b+8+8*h}')
        for m in range(4):
            a(f'ds_write_b32 v{aKw}, v{EV+4*sl+m} offset:{2*KP+b+4+4*m}')
            a(f'ds_write_b32 v{aKw}, v{OD+4*sl+m} offset:{KP+b+4+4*m}')
    pk(T+5, 12, 13); pk(T+6, 14, 15)
    a('s_mov_b32 exec_lo, 0xaaaaaaaa\ns_mov_b32 exec_hi, 0xaaaaaaaa')
    for sl in range(2):
        for r in range(4):
            off = 32 + 64*sl + 194*r
            a(f'ds_write_b16_d16_hi v{aK3w}, v{T+5+sl} offset:{off}')
            a(f'ds_write_b16 v{aK3w}, v{T+5+sl} offset:{768+off}')
    a('s_mov_b64 exec, -1')
    uwrite(0)
    a('s_waitcnt lgkmcnt(0)\ns_barrier')
    stamp(a, 4)
    accv = lambda t: vr(ACC+4*t, 4)
    started = set()
    def mf(t, A, B):
        a(f'{MF16} {accv(t)}, {vr(A,4)}, {vr(B,4)}, {accv(t) if t in started else "0"}'); started.add(t)
    def ldA(dst, dl):
        for hf in range(2):
            a(f'ds_read_b64_tr_b16 {vr(dst+2*hf,2)}, v{aKA} offset:{32+32*dl-8*hf}')
    def ldB(dst, jb, r):
        a(f'ds_read_b128 {vr(dst,4)}, v{aUB} offset:{512+512*jb-32*r}')
    def conv_group(jbs, pairs, extra=None):
        nB = len(jbs)
        def regs(buf):
            base = FR + 48*buf
            return (lambda x: base + 4*x), (lambda jb: base + 16 + 4*jbs.index(jb))
        def loads(r, buf):
            fa, fb = regs(buf)
            seq = []
            for k in range(max(4, nB)):
                if k < nB: seq.append(('B', jbs[k]))
                if k < 4: seq.append(('A', k))
            return [(lambda kind=kind, v=v: ldB(fb(v), v, r) if kind == 'B' else ldA(fa(v), r+16*v)) for kind, v in seq]
        for f in loads(1, 0): f()
        for n, r in enumerate(range(1, 16, 2)):
            fa, fb = regs(n & 1)
            nxt = loads(r+2, (n+1) & 1) if r < 15 else []
            todo = list(pairs)
            k = 0
            for (x, t) in todo:
                mf(t, fa(x), fb(t-x))
                if k < len(nxt): nxt[k](); k += 1
            for f in nxt[k:]: f()
            if extra and r == 1: extra(fb)
    def extra65(fb):
        ldA(GA, 65)
        for t in range(4, 8): mf(t, GA, fb(t-4))
    pairs_a = sorted([(x, t) for t in range(4) for x in range(t+1)], key=lambda p: max(p[0], p[1]-p[0]))
    conv_group([0,1,2,3], pairs_a, extra65)
    stamp(a, 5)
    for yb in range(4):
        for p in range(2):
            a(f'ds_read_b128 {vr(FR+8*yb+4*p,4)}, v{aUB} offset:{512+512*yb-48+16*p}')
    for dl in range(4):
        for s in range(2):
            a(f'ds_read_b64_tr_b16 {vr(FR+32+4*dl+2*s,2)}, v{aK3r} offset:{768*s+32*(dl+1)}')
    for yb in range(4):
        for p in range(2):
            a(f'{MF16} {vr(GA+8*yb+4*p,4)}, {vr(FR+8*yb+4*p,4)}, {vr(BAND+4*p,4)}, 0')
    def stage(h):
        for t in range(4):
            for k in range(2):
                a(f'v_cvt_pk_bf16_f32 v{W_+8+2*t+k}, v{ACC+16*h+4*t+2*k}, v{ACC+16*h+4*t+2*k+1}')
            a(f'ds_write_b64 v{aSw}, {vr(W_+8+2*t,2)} offset:{STB*h+512*t}')
    stage(0)
    for yb in range(4):
        for p in range(2):
            for k in range(2):
                a(f'v_cvt_pk_bf16_f32 v{FR+4*yb+2*p+k}, v{GA+8*yb+4*p+2*k}, v{GA+8*yb+4*p+2*k+1}')
    for yb in range(4):
        for t in range(4+yb, 8):
            mf(t, FR+4*yb, FR+32+4*(t-yb-4))
    uwrite(1)
    a('s_waitcnt lgkmcnt(0)\ns_barrier')
    stamp(a, 6)
    def flush(h):
        for q in range(2):
            for hc in range(2):
                a(f'ds_read_b64_tr_b16 {vr(GA+4*q+2*hc,2)}, v{aSr} offset:{STB*h+4*SP_*hc+128*q}')
        for q in range(2):
            a(f's_mov_b32 s{sT}, {(1024*h+64*q)*4096}')
            a(f'buffer_store_dwordx4 {vr(GA+4*q,4)}, v{aOut}, {srd(sOUT)}, s{sT} offen')
    flush(0)
    pairs_b = sorted([(x, t) for t in range(4, 8) for x in range(4)], key=lambda p: max(p[0], p[1]-p[0]-1))
    conv_group([1,2,3,4,5,6,7], pairs_b)
    stamp(a, 7)
    stage(1)
    a('s_waitcnt lgkmcnt(0)\ns_barrier')
    flush(1)
    stamp(a, 8)
    if OPT['stamps']:
        a('s_waitcnt vmcnt(0)')
        stamp(a, 9)
        stamps_out(a, 10, T+1)
    a('s_endpgm')
    a.label('L_B_end')
    a.reset_counters()

HEADER = open('concat_heads__spectral_gfnet__ssm_conv_s4__prompt.s.ref').read().split('; Override launch')[0]

def build(**opt):
    OPT.update(opt)
    a = Asm()
    stamp(a, 0)
    a('s_cmp_ge_u32 s2, 256\ns_cbranch_scc1 L_exit')
    a('s_cmp_ge_u32 s2, 128\ns_cbranch_scc1 L_B')
    gen_A(a)
    gen_B(a)
    a.label('L_exit')
    a('s_endpgm')
    a.pad()
    s = HEADER + f'; @launch grid=(256,1,1) block=(512,1,1) lds={LDS_BYTES}\n'
    s += f'''.amdgcn_target "amdgcn-amd-amdhsa--gfx950"
.text
.globl {KN}
.p2align 8
.type {KN},@function
{KN}:
''' + a.text() + f'''.section .rodata,"a"
.p2align 6
.amdhsa_kernel {KN}
  .amdhsa_next_free_vgpr 256
  .amdhsa_next_free_sgpr 102
  .amdhsa_accum_offset 256
  .amdhsa_group_segment_fixed_size 0
  .amdhsa_kernarg_size 120
  .amdhsa_user_sgpr_count 2
  .amdhsa_user_sgpr_kernarg_segment_ptr 1
  .amdhsa_system_sgpr_workgroup_id_x 1
.end_amdhsa_kernel
'''
    return s, a

if __name__ == '__main__':
    out = sys.argv[1] if len(sys.argv) > 1 else 'k.s'
    s, a = build(stamps='stamps' in sys.argv)
    open(out, 'w').write(s)
    print('instructions', sum(1 for x in a.ins if x.kind not in ('label','dir')), 'nops', a.nops)
```

```python
import sys, struct, math, itertools
from asmlib import Asm

KN = 'concat_heads__spectral_gfnet__ssm_conv_s4__prompt_kernel'
def fh(x): return '0x%08x' % struct.unpack('<I', struct.pack('<f', x))[0]
def vr(b, n): return f'v[{b}:{b+n-1}]'

OPT = dict(stamps=False)

Z1 = 0; Z2 = 4 << 20; FL1 = 8 << 20; FL2 = FL1 + 65536; GEN = FL1 + 131072; STAMP = 16 << 20
FLS = 256
WS_SIZE = 268435456
LDS_BYTES = 154688

MF16 = 'v_mfma_f32_16x16x32_bf16'
MF32 = 'v_mfma_f32_32x32x16_bf16'

sW = 3
sX, sWR, sWI, sOUT, sWS = 8, 12, 16, 20, 24
def srd(b): return f's[{b}:{b+3}]'
sT = 28
sNONCE = 40; sA = 41; sB = 42; sBP = 43; sDQ = 44; sSWZ = 45; sSPEC = 46; sM = 48
sCNT = 52; sMSK = 54
sST = 60

def stamp(a, k):
    if OPT['stamps']:
        a(f's_memrealtime s[{sST+2*k}:{sST+2*k+1}]')

def stamps_out(a, n, vt, dbgmap=None):
    if not OPT['stamps']: return
    if OPT.get('dbg'):
        a('s_load_dwordx2 s[28:29], s[0:1], 104\ns_mov_b32 s30, 256\ns_mov_b32 s31, 0x20000\ns_waitcnt lgkmcnt(0)')
        a(f's_not_b32 s{sST}, s{sST}')
        a('s_mov_b64 exec, 1')
        a(f's_cmp_lg_u32 s{sW}, 0')
        with a.cond('s_cbranch_scc1'):
            for k, slot in dbgmap.items():
                a(f'v_mov_b32 v{vt+1}, s{sST+2*k}')
                a(f'buffer_atomic_umax v{vt+1}, off, s[28:31], 0 offset:{4*slot}')
        a('s_mov_b64 exec, -1')
        return
    a('s_waitcnt lgkmcnt(0)')
    a(f's_lshl_b32 s{sT}, s2, 3\ns_add_u32 s{sT}, s{sT}, s{sW}\ns_lshl_b32 s{sT}, s{sT}, 6\ns_add_u32 s{sT}, s{sT}, {STAMP}')
    a(f'v_mov_b32 v{vt}, s{sT}')
    a('s_mov_b64 exec, 1')
    for k in range(n):
        a(f'v_mov_b32 v{vt+1}, s{sST+2*k}')
        a(f'buffer_store_dword v{vt+1}, v{vt}, {srd(sWS)}, 0 offen offset:{4*k}')
    a('s_mov_b64 exec, -1')

def calib(a):
    n = OPT.get('calib')
    if not n: return
    lab = a.newlab('Lcal')
    a('s_waitcnt vmcnt(0) lgkmcnt(0)')
    a.label(lab)
    a(f'''s_memrealtime s[30:31]
    s_waitcnt lgkmcnt(0)
    s_sub_u32 s30, s30, s96
    s_cmp_lt_u32 s30, {n}
    s_cbranch_scc1 {lab}''')

def trig4(a, args, tmp):
    for i, r in enumerate(args):
        a(f'v_cos_f32 v{tmp+2*i}, v{r}')
        a(f'v_sin_f32 v{tmp+2*i+1}, v{r}')

def args4(a, dst, vx, vbase, step):
    for m in (3, 2, 1):
        a(f'v_fmamk_f32 v{dst+m}, v{vx}, {fh(step*m)}, v{vbase}')
    if vbase != dst: a(f'v_mov_b32 v{dst}, v{vbase}')

def matrix(a, re, im, args, tmp):
    trig4(a, args, tmp)
    for m in range(len(args)):
        a(f'v_cvt_pk_bf16_f32 v{re+m}, v{tmp+2*m}, v{tmp+2*m+1}')
        a(f'v_cvt_pk_bf16_f32 v{im+m}, -v{tmp+2*m+1}, v{tmp+2*m}')

def twiddle(a, dst, re, im, tw, tmp):
    for r in range(4):
        a(f'v_mul_f32 v{tmp+2*r}, v{re+r}, v{tw+2*r}')
        a(f'v_mul_f32 v{tmp+2*r+1}, v{im+r}, v{tw+2*r}')
    for r in range(4):
        a(f'v_fmac_f32 v{tmp+2*r}, v{im+r}, v{tw+2*r+1}')
        a(f'v_fma_f32 v{tmp+2*r+1}, -v{re+r}, v{tw+2*r+1}, v{tmp+2*r+1}')
    for r in range(4):
        a(f'v_cvt_pk_bf16_f32 v{dst+r}, v{tmp+2*r}, v{tmp+2*r+1}')

def poll(a, base, va, vf):
    lab = a.newlab('Lpoll'); done = a.newlab('Lpolldone')
    a(f's_mov_b32 s{sCNT}, 100000')
    a(f's_mov_b32 s{sT}, {base}\ns_mov_b32 s{sT+1}, {base+64*FLS}')
    a.label(lab)
    a(f'buffer_load_dword v{vf}, v{va}, {srd(sWS)}, s{sT} offen sc1')
    a(f'buffer_load_dword v{vf+1}, v{va}, {srd(sWS)}, s{sT+1} offen sc1')
    a('s_waitcnt vmcnt(0)')
    a(f'v_cmp_ne_u32 vcc, s{sNONCE}, v{vf}')
    a(f'v_cmp_ne_u32 s[{sMSK}:{sMSK+1}], s{sNONCE}, v{vf+1}')
    a(f's_or_b64 vcc, vcc, s[{sMSK}:{sMSK+1}]')
    a('s_and_b64 exec, exec, vcc')
    a(f's_cbranch_scc0 {done}')
    a(f's_sub_u32 s{sCNT}, s{sCNT}, 1')
    a(f's_cmp_lg_u32 s{sCNT}, 0')
    a(f's_cbranch_scc1 {lab}')
    a.label(done)
    a('s_mov_b64 exec, -1')

def prefetch_code(a, start, end, vt):
    a(f's_getpc_b64 s[{sT}:{sT+1}]')
    lab = a.newlab('Lpc'); a.label(lab)
    a(f'v_lshlrev_b32 v{vt}, 6, v0')
    a(f'v_min_u32 v{vt}, ({end}-{lab}-4), v{vt}')
    a(f'global_load_dword v{vt+1}, v{vt}, s[{sT}:{sT+1}]')

def gen_A(a):
    vJ, vG, vL = 1, 2, 3
    T = 4
    L, X, ACC = 16, 32, 48
    C1 = 80; MR = C1; MD1 = C1+8; TW = C1+16; MD2 = C1+32
    C2 = 136; M1 = C2; T1 = C2+8; M8 = C2+16; T1i = C2+24; M1i = C2+32
    CO = 176
    AD = 224
    aX, aE1w, aE1r, aZ, aFl, aNon, aDma, aI2, aWw, aWr, aO2w, aO2r, aZ2, aW0, aW1 = \
        AD, AD+1, AD+2, AD+3, AD+4, AD+5, AD+6, AD+8, AD+12, AD+13, AD+15, AD+16, AD+17, AD+18, AD+19
    aSp = AD+20
    fJ, fG = AD+24, AD+25
    TT = AD+26
    E1 = 0; I2 = 36864; O2 = I2 + 32768; WSL = O2 + 34816; MIR = WSL + 33280; E3 = 0
    assert MIR + 1024 <= LDS_BYTES
    acc = lambda tile, part: ACC + 8*tile + 4*part

    a.label('L_A')
    prefetch_code(a, 'L_A', 'L_A_end', TT)
    a(f'''s_load_dwordx2 s[{sX}:{sX+1}], s[0:1], 0
    s_load_dwordx2 s[{sWS}:{sWS+1}], s[0:1], 112
    s_load_dwordx2 s[{sWR}:{sWR+1}], s[0:1], 8
    s_load_dwordx2 s[{sWI}:{sWI+1}], s[0:1], 16
    s_load_dwordx2 s[{sOUT}:{sOUT+1}], s[0:1], 96
    s_mov_b32 s{sX+2}, 4194304
    s_mov_b32 s{sX+3}, 0x20000
    s_mov_b32 s{sWS+2}, {WS_SIZE}
    s_mov_b32 s{sWS+3}, 0x20000
    s_mov_b32 s{sWR+2}, 2101248
    s_mov_b32 s{sWR+3}, 0x20000
    s_mov_b32 s{sWI+2}, 2101248
    s_mov_b32 s{sWI+3}, 0x20000
    s_mov_b32 s{sOUT+2}, 8388608
    s_mov_b32 s{sOUT+3}, 0x20000
    v_lshrrev_b32 v{T}, 6, v0
    v_and_b32 v{vL}, 63, v0
    v_readfirstlane_b32 s{sW}, v{T}
    v_and_b32 v{vJ}, 15, v0
    v_bfe_u32 v{vG}, v0, 4, 2
    s_lshl_b32 s{sM}, s2, 11
    s_add_u32 s{sM+1}, s{sM}, 262144
    s_add_u32 s{sM+2}, s{sM}, 524288
    s_add_u32 s{sM+3}, s{sM}, 786432
    v_lshlrev_b32 v{aX}, 20, v{vG}
    v_lshl_or_b32 v{aX}, v{vJ}, 3, v{aX}
    v_lshl_or_b32 v{aX}, v{T}, 8, v{aX}''')
    xsrc = {}
    for m in range(4):
        for nb in range(2):
            r = L + 4*m + 2*nb
            xsrc[m, nb] = r
            a(f'buffer_load_dwordx2 {vr(r,2)}, v{aX}, {srd(sX)}, s{sM+m} offen offset:{128*nb}')
    stamp(a, 1)
    a(f'v_mov_b32 v{aNon}, {GEN}')
    a(f'buffer_load_dword v{aNon}, v{aNon}, {srd(sWS)}, 0 offen sc1')
    a(f'''s_lshr_b32 s{sSWZ}, s2, 4
    s_and_b32 s{sSWZ}, s{sSWZ}, 2
    s_and_b32 s{sA}, s2, 7
    s_lshr_b32 s{sB}, s2, 3
    s_lshl_b32 s{sBP}, s{sA}, 12
    s_mov_b32 s{sDQ}, 2048
    s_mov_b32 s{sSPEC}, 0
    s_cmp_lg_u32 s{sA}, 0''')
    with a.cond('s_cbranch_scc1'):
        a(f'''s_and_b32 s{sA}, s{sB}, 8
        s_lshl_b32 s{sBP}, s{sA}, 8
        s_and_b32 s{sB}, s{sB}, 7
        s_mov_b32 s{sDQ}, 1024
        s_mov_b32 s{sSPEC}, 1''')
    a(f'''s_lshl_b32 s{sT}, s{sB}, 7
    s_add_u32 s{sBP}, s{sBP}, s{sT}''')
    a(f'v_cvt_f32_u32 v{fJ}, v{vJ}\nv_cvt_f32_u32 v{fG}, v{vG}')
    a(f'''v_lshrrev_b32 v{T}, 1, v{vJ}
    v_cmp_eq_u32 vcc, 1, v{vJ}
    v_cndmask_b32 v{T}, v{T}, 8, vcc
    v_cvt_f32_u32 v{T}, v{T}
    v_and_b32 v{T+1}, 1, v{vJ}
    v_lshlrev_b32 v{T+1}, 31, v{T+1}
    v_cndmask_b32 v{TT+2}, v{T+1}, 0, vcc
    v_mul_f32 v{T+1}, 0x3e800000, v{fG}
    v_mul_f32 v{X}, v{T}, v{T+1}''')
    args4(a, X, T, X, 1/16)
    matrix(a, MR, MR+4, [X+m for m in range(4)], ACC)
    for m in range(8): a(f'v_xor_b32 v{MR+m}, v{TT+2}, v{MR+m}')
    a(f'''v_xor_b32 v{T}, s{sSWZ}, v{vJ}
    v_cvt_f32_u32 v{T}, v{T}
    v_mul_f32 v{X}, v{T}, v{T+1}''')
    args4(a, X, T, X, 1/16)
    matrix(a, MD1, MD1+4, [X+m for m in range(4)], ACC)
    a(f'v_mul_f32 v{T+2}, {fh(1/64)}, v{fG}\nv_mul_f32 v{X}, v{T}, v{T+2}')
    a(f'v_fmamk_f32 v{X+4}, v{T}, {fh(1/512)}, v{X}')
    args4(a, X, T, X, 2/512); args4(a, X+4, T, X+4, 2/512)
    trig4(a, [X+m for m in range(8)], TW)
    a(f'v_mul_f32 v{X}, v{fJ}, v{T+1}')
    a(f'v_fmamk_f32 v{X+4}, v{fJ}, {fh(1/32)}, v{X}')
    args4(a, X, fJ, X, 2/32); args4(a, X+4, fJ, X+4, 2/32)
    matrix(a, MD2, MD2+4, [X+m for m in range(4)], ACC)
    matrix(a, MD2+8, MD2+12, [X+4+m for m in range(4)], ACC+8)
    for m in range(8): a(f'v_xor_b32 v{MD2+16+m}, 0x80008000, v{MD2+8+m}')
    a(f'''v_mul_u32_u24 v{T}, 72, v{vJ}
    s_lshl_b32 s{sT}, s{sW}, 3
    v_mul_u32_u24 v{aE1w}, 9216, v{vG}
    v_add3_u32 v{aE1w}, v{aE1w}, v{T}, s{sT}
    s_mul_i32 s{sT}, s{sW}, 4608
    v_lshl_add_u32 v{aE1r}, v{vG}, 4, v{T}
    v_add_u32 v{aE1r}, s{sT}, v{aE1r}
    s_lshl_b32 s{sT}, s{sW}, 12
    s_lshl_b32 s{sT+1}, s2, 15
    s_add_u32 s{sT}, s{sT}, s{sT+1}
    v_lshlrev_b32 v{aZ}, 6, v{vJ}
    v_lshl_or_b32 v{aZ}, v{vG}, 4, v{aZ}
    v_add_u32 v{aZ}, s{sT}, v{aZ}''')
    for r in range(4): a(f'v_mov_b32 v{aSp+r}, 0')
    a(f's_cmp_lg_u32 s{sW}, 0')
    with a.cond('s_cbranch_scc1'):
        for r in range(4):
            a(f'''v_lshl_or_b32 v{T}, v{vG}, 2, {r}
            v_xor_b32 v{T}, s{sSWZ}, v{T}
            v_lshl_add_u32 v{T}, v{vJ}, 4, v{T}
            v_sub_u32 v{T}, 256, v{T}
            v_and_b32 v{T}, 255, v{T}
            v_xor_b32 v{T}, s{sSWZ}, v{T}
            v_lshlrev_b32 v{T}, 2, v{T}
            v_add_u32 v{aSp+r}, s{sT+1}, v{T}''')
    xt = lambda nb, tp: X + 4*(2*tp + nb)
    for tp in range(2):
        for nb in range(2):
            for h in range(2):
                a(f'v_pk_mov_b32 {vr(xt(nb,tp)+2*h,2)}, {vr(xsrc[2*h,nb],2)}, {vr(xsrc[2*h+1,nb],2)} op_sel:[{tp},{tp}]')
    stamp(a, 2)
    for tp in range(2):
        for nb in range(2):
            for part in range(2):
                a(f'{MF16} {vr(acc(2*tp+nb,part),4)}, {vr(MR+4*part,4)}, {vr(xt(nb,tp),4)}, 0')
    for tp in range(2):
        for r in range(4):
            for nb in range(2):
                a(f'v_cvt_pk_bf16_f32 v{L+8*tp+2*r+nb}, v{acc(2*tp+nb,0)+r}, v{acc(2*tp+nb,1)+r}')
            a(f'ds_write_b64 v{aE1w}, {vr(L+8*tp+2*r,2)} offset:{E1+2304*r+1152*tp}')
    a('s_waitcnt lgkmcnt(0)\ns_barrier')
    for wh in range(2):
        for t in range(2):
            for h in range(2):
                a(f'ds_read_b64 {vr(X+8*wh+4*t+2*h,2)}, v{aE1r} offset:{E1+2304*wh+1152*t+8*h}')
    for tile in range(4):
        for part in range(2):
            a(f'{MF16} {vr(acc(tile,part),4)}, {vr(X+4*tile,4)}, {vr(MD1+4*part,4)}, 0')
    for wh in range(2):
        for t in range(2):
            twiddle(a, X+8*wh+4*t, acc(2*wh+t,0), acc(2*wh+t,1), TW+8*t, T)
        for N in range(2):
            for part in range(2):
                a(f'{MF16} {vr(acc(2*wh+N,part),4)}, {vr(X+8*wh,4)}, {vr(MD2+4*part,4)}, 0')
        for N in range(2):
            for part in range(2):
                a(f'{MF16} {vr(acc(2*wh+N,part),4)}, {vr(X+8*wh+4,4)}, {vr(MD2+8+8*N+4*part,4)}, {vr(acc(2*wh+N,part),4)}')
    def z1_store(wh, N):
        for r in range(4):
            a(f'v_cvt_pk_bf16_f32 v{L+8*wh+4*N+r}, v{acc(2*wh+N,0)+r}, v{acc(2*wh+N,1)+r}')
        a(f'buffer_store_dwordx4 {vr(L+8*wh+4*N,4)}, v{aZ}, {srd(sWS)}, 0 offen offset:{2048*wh+1024*N} sc1')
        a.tag_vm('z1')
    z1_store(0, 0)
    def norm1():
        z1_store(0, 1); z1_store(1, 0); z1_store(1, 1)
    def spec1():
        for wh in range(2):
            if wh: z1_store(1, 0)
            for r in range(4):
                a(f'v_cvt_pk_bf16_f32 v{L+8*wh+4+r}, v{acc(2*wh+1,0)+r}, -v{acc(2*wh+1,1)+r}')
                a(f'buffer_store_dword v{L+8*wh+4+r}, v{aSp+r}, {srd(sWS)}, 0 offen offset:{2048*wh+1024} sc1')
                a.tag_vm('z1')
    a(f's_cmp_eq_u32 s{sW}, 0')
    a.ifelse('s_cbranch_scc1', norm1, spec1)
    stamp(a, 3)
    WL = X
    a(f'''v_lshrrev_b32 v{T}, 2, v0
    v_lshl_add_u32 v{T}, v{T}, 4, s{sA}
    v_sub_u32 v{T+1}, 0, v{T}
    v_and_b32 v{T+1}, 0x7ff, v{T+1}
    v_and_b32 v{T+2}, 3, v0
    v_lshlrev_b32 v{T+2}, 4, v{T+2}
    s_movk_i32 s{sT}, 1026
    v_mad_u32_u24 v{aW0}, v{T}, s{sT}, v{T+2}
    v_mad_u32_u24 v{aW1}, v{T+1}, s{sT}, v{T+2}
    s_lshl_b32 s{sT+1}, s{sB}, 6
    s_sub_u32 s{sT+2}, 962, s{sT+1}''')
    a(f'buffer_load_dwordx4 {vr(WL,4)}, v{aW0}, {srd(sWR)}, s{sT+1} offen')
    a(f'buffer_load_dwordx4 {vr(WL+4,4)}, v{aW0}, {srd(sWI)}, s{sT+1} offen')
    a(f'buffer_load_dwordx4 {vr(WL+8,4)}, v{aW1}, {srd(sWR)}, s{sT+2} offen')
    a(f'buffer_load_dwordx4 {vr(WL+12,4)}, v{aW1}, {srd(sWI)}, s{sT+2} offen')
    a(f'v_readfirstlane_b32 s{sNONCE}, v{aNon}')
    a.wait_vm_tag('z1')
    a('s_barrier')
    a(f's_add_u32 s{sNONCE}, s{sNONCE}, 0x9e3779b9')
    stamp(a, 4)
    SP = C1
    a(f's_cmp_lg_u32 s{sW}, 0')
    with a.cond('s_cbranch_scc1'):
        a(f'''s_mul_i32 s{sT}, s2, {FLS}
        s_add_u32 s{sT}, s{sT}, {FL1}
        v_mov_b32 v{T}, s{sT}
        v_mov_b32 v{T+1}, s{sNONCE}
        s_mov_b64 exec, 1
        buffer_store_dword v{T+1}, v{T}, {srd(sWS)}, 0 offen sc1
        s_mov_b64 exec, -1
        s_cmp_lg_u32 s{sB}, 0''')
        with a.cond('s_cbranch_scc1'):
            a(f'''v_and_b32 v{T}, 1, v{vG}
            v_lshlrev_b32 v{T}, 10, v{T}
            v_lshl_add_u32 v{T}, v{vJ}, 4, v{T}
            v_add_u32 v{T}, s{sA}, v{T}
            s_movk_i32 s{sT}, 1026''')
            for r in range(4):
                a(f'''v_add_u32 v{T+1}, {256*r}, v{T}
                v_sub_u32 v{T+2}, 0, v{T+1}
                v_and_b32 v{T+2}, 0x7ff, v{T+2}
                v_mul_u32_u24 v{T+3+2*r}, s{sT}, v{T+1}
                v_mul_u32_u24 v{T+4+2*r}, s{sT}, v{T+2}''')
                a(f'buffer_load_short_d16_hi v{SP+6*r}, v{T+4+2*r}, {srd(sWR)}, 0 offen')
                a(f'buffer_load_short_d16_hi v{SP+6*r+1}, v{T+4+2*r}, {srd(sWI)}, 0 offen')
                a(f'buffer_load_short_d16_hi v{SP+6*r+2}, v{T+3+2*r}, {srd(sWR)}, 0 offen offset:1024')
                a(f'buffer_load_short_d16_hi v{SP+6*r+3}, v{T+3+2*r}, {srd(sWI)}, 0 offen offset:1024')
                a(f'buffer_load_short_d16_hi v{SP+6*r+4}, v{T+3+2*r}, {srd(sWR)}, 0 offen offset:512')
                a(f'buffer_load_short_d16_hi v{SP+6*r+5}, v{T+3+2*r}, {srd(sWI)}, 0 offen offset:512')
    fK, fS, fF = T, T+1, T+2
    AR = L
    a(f'''v_cvt_f32_u32 v{fF}, s{sA}
    v_mul_f32 v{fF}, {fh(1/16)}, v{fF}
    v_add_f32 v{fK}, v{fJ}, v{fF}
    v_and_b32 v{fS}, 1, v{vG}
    v_lshlrev_b32 v{fS}, 2, v{fS}
    v_cvt_f32_u32 v{fS}, v{fS}
    v_mul_f32 v{T+3}, 0x3e800000, v{fG}
    v_mul_f32 v{AR}, v{fK}, v{T+3}''')
    args4(a, AR, fK, AR, 1/16)
    matrix(a, M1, M1+4, [AR+m for m in range(4)], ACC)
    a(f'v_mul_f32 v{T+3}, {fh(1/128)}, v{fS}\nv_mul_f32 v{AR}, v{fK}, v{T+3}')
    args4(a, AR, fK, AR, 1/128)
    trig4(a, [AR+m for m in range(4)], T1)
    a(f'''v_and_b32 v{T+4}, 7, v{vJ}
    v_cvt_f32_u32 v{T+4}, v{T+4}
    v_mul_f32 v{T+3}, 0x3e000000, v{fS}
    v_mul_f32 v{AR}, v{T+4}, v{T+3}''')
    args4(a, AR, T+4, AR, 1/8)
    matrix(a, M8, M8+4, [AR+m for m in range(4)], ACC)
    a(f'''v_lshrrev_b32 v{T+5}, 3, v{vJ}
    v_lshrrev_b32 v{T+6}, 1, v{vG}
    v_cmp_eq_u32 vcc, v{T+5}, v{T+6}''')
    for m in range(8): a(f'v_cndmask_b32 v{M8+m}, 0, v{M8+m}, vcc')
    a(f'''v_fmamk_f32 v{T+3}, v{fG}, 4.0, v{fF}
    v_mul_f32 v{T+7}, {fh(1/128)}, v{T+3}
    v_mul_f32 v{AR}, v{T+4}, v{T+7}'''.replace('4.0', fh(4.0)))
    args4(a, AR, T+4, AR, 1/128)
    trig4(a, [AR+m for m in range(4)], T1i)
    a(f'v_mul_f32 v{T+7}, {fh(1/16)}, v{T+3}\nv_mul_f32 v{AR}, v{fJ}, v{T+7}')
    args4(a, AR, fJ, AR, 1/16)
    matrix(a, M1i, M1i+4, [AR+m for m in range(4)], ACC)
    a(f'''v_bfe_u32 v{T}, v{vL}, 3, 1
    v_mul_u32_u24 v{T}, s{sDQ}, v{T}
    v_lshl_add_u32 v{T}, v{vG}, 15, v{T}
    v_add_u32 v{T}, s{sBP}, v{T}
    v_and_b32 v{T+1}, 7, v{vL}
    v_lshl_add_u32 v{aZ2}, v{T+1}, 4, v{T}
    v_xor_b32 v{T+1}, v{T+1}, v{vG}
    v_lshl_add_u32 v{aDma}, v{T+1}, 4, v{T}
    v_xor_b32 v{T+1}, 4, v{T+1}
    v_lshl_add_u32 v{aDma+1}, v{T+1}, 4, v{T}''')
    a(f'''v_and_b32 v{T}, 7, v{vJ}
    s_lshr_b32 s{sT}, s{sW}, 1
    v_xor_b32 v{T+1}, s{sT}, v{T}
    v_lshlrev_b32 v{T+1}, 4, v{T+1}
    v_lshl_or_b32 v{T+1}, v{T}, 8, v{T+1}
    v_lshl_or_b32 v{T+1}, v{vG}, 13, v{T+1}
    v_xor_b32 v{T+2}, s{sW}, v{vG}
    v_and_b32 v{T+2}, 1, v{T+2}
    v_lshl_or_b32 v{T+2}, v{T+2}, 1, v{T+5}
    v_lshl_or_b32 v{T+1}, v{T+2}, 2, v{T+1}
    v_add_u32 v{aI2}, {I2}, v{T+1}
    v_add_u32 v{aI2+1}, {I2+128}, v{T+1}
    v_xor_b32 v{T+1}, 64, v{T+1}
    v_add_u32 v{aI2+2}, {I2}, v{T+1}
    v_add_u32 v{aI2+3}, {I2+128}, v{T+1}''')
    a(f'''s_lshr_b32 s{sT}, s{sW}, 2
    s_lshl_b32 s{sT}, s{sT}, 4
    s_and_b32 s{sT+1}, s{sW}, 3
    s_lshl_b32 s{sT+1}, s{sT+1}, 5
    s_add_u32 s{sT}, s{sT}, s{sT+1}
    s_lshl_b32 s{sT}, s{sT}, 2
    s_add_u32 s{sT}, s{sT}, {WSL}
    v_and_b32 v{T}, 3, v{vL}
    v_mul_u32_u24 v{T}, 2080, v{T}
    v_and_b32 v{T+1}, 60, v{vL}
    v_add3_u32 v{aWw}, v{T}, v{T+1}, s{sT}
    v_and_b32 v{T}, 1, v{vG}
    v_lshl_add_u32 v{T}, v{T}, 4, v{vJ}
    v_lshlrev_b32 v{T}, 2, v{T}
    v_lshl_add_u32 v{T+1}, v{T+6}, 1, v{T}
    v_xor_b32 v{T+2}, 2, v{T+1}
    s_mul_i32 s{sT}, s{sW}, 520
    s_add_u32 s{sT+1}, s{sT}, {WSL}
    s_sub_u32 s{sT+2}, {WSL+7*520}, s{sT}
    v_add_u32 v{aWr}, s{sT+1}, v{T+1}
    v_add_u32 v{aWr+1}, s{sT+2}, v{T+2}''')
    a(f'''v_and_b32 v{T}, 7, v{vJ}
    v_lshl_add_u32 v{T}, v{vG}, 5, v{T}
    v_mul_u32_u24 v{T}, 272, v{T}
    v_lshl_add_u32 v{T}, v{T+5}, 3, v{T}
    s_lshl_b32 s{sT}, s{sW}, 4
    s_add_u32 s{sT}, s{sT}, {O2}
    v_add_u32 v{aO2w}, s{sT}, v{T}
    v_mul_u32_u24 v{T}, 272, v{vG}
    v_lshl_add_u32 v{T}, v{vJ}, 4, v{T}
    s_mul_i32 s{sT}, s{sW}, {16*272}
    s_add_u32 s{sT}, s{sT}, {O2}
    v_add_u32 v{aO2r}, s{sT}, v{T}
    v_mul_u32_u24 v{aFl}, {FLS}, v{vL}''')
    SC = 1.0/(2048*512)/2
    TH = C1+24
    a(f'''s_lshl_b32 s{sT}, s{sB}, 5
    s_lshl_b32 s{sT+1}, s{sW}, 1
    s_add_u32 s{sT}, s{sT}, s{sT+1}
    v_add_u32 v{T}, s{sT}, v{T+6}
    v_cvt_f32_u32 v{T}, v{T}
    v_mul_f32 v{T}, {fh(1/1024)}, v{T}
    v_add_f32 v{T+1}, {fh(16/1024)}, v{T}
    v_sin_f32 v{TH}, v{T}
    v_cos_f32 v{TH+1}, v{T}
    v_sin_f32 v{TH+2}, v{T+1}
    v_cos_f32 v{TH+3}, v{T+1}''')
    for k in range(4): a(f'v_mul_f32 v{TH+k}, {fh(SC)}, v{TH+k}')
    a(f's_cmp_lg_u32 s{sW}, 0')
    with a.cond('s_cbranch_scc1'):
        poll(a, FL1, aFl, T)
        a('s_cmp_lg_u32 s2, 0')
        with a.cond('s_cbranch_scc1'):
            a(f'''v_mov_b32 v{T}, {GEN}
            v_mov_b32 v{T+1}, s{sNONCE}
            s_mov_b64 exec, 1
            buffer_store_dword v{T+1}, v{T}, {srd(sWS)}, 0 offen sc1
            s_mov_b64 exec, -1''')
    a('s_barrier')
    stamp(a, 5)
    a(f'''s_lshl_b32 s{sT}, s{sW}, 19
    s_lshl_b32 s{sT+1}, s{sW}, 12
    s_add_u32 s{sT+1}, s{sT+1}, {I2}''')
    for q in range(4):
        a(f's_mov_b32 m0, s{sT+1}')
        a(f'buffer_load_dwordx4 v{aDma+(q&1)}, {srd(sWS)}, s{sT} offen sc1 lds')
        a.tag_vm('dma')
        if q < 3: a(f's_add_u32 s{sT}, s{sT}, {4*32768}\ns_add_u32 s{sT+1}, s{sT+1}, 1024')
    for q in range(4):
        for i in range(4):
            a(f'ds_write_b32 v{aWw}, v{WL+4*q+i} offset:{4*(2080*q+130*i)}')
    a('s_waitcnt lgkmcnt(0)\ns_barrier')
    raw = lambda t, r, q: ACC + 16*t + 4*r + q
    for t in range(2):
        for r in range(4):
            for q in range(4):
                if q < 2: a(f'ds_read_u16_d16_hi v{raw(t,r,q)}, v{aWr} offset:{4*(2080*q+1040*t+32*r)}')
                else: a(f'ds_read_u16_d16_hi v{raw(t,r,q)}, v{aWr+1} offset:{4*(2080*q+1040*(1-t)+32*r)}')
    a(f's_or_b32 s{sT}, s{sW}, s{sB}')
    with a.cond('s_cbranch_scc1'):
        a('s_mov_b32 exec_hi, 0')
        for r in range(4):
            a(f'''v_add_f32 v{raw(0,r,0)}, v{raw(0,r,0)}, v{SP+6*r}
            v_sub_f32 v{raw(0,r,1)}, v{raw(0,r,1)}, v{SP+6*r+1}
            v_add_f32 v{raw(0,r,2)}, v{raw(0,r,2)}, v{SP+6*r+2}
            v_sub_f32 v{raw(0,r,3)}, v{raw(0,r,3)}, v{SP+6*r+3}''')
            for q in range(4): a(f'v_mul_f32 v{raw(0,r,q)}, 0.5, v{raw(0,r,q)}')
        a('s_mov_b64 exec, -1')
    co = lambda t, r, k: CO + 24*t + 6*r + k
    for t in range(2):
        for r in range(4):
            a0, b0, a1, b1 = [raw(t,r,q) for q in range(4)]
            a(f'''v_add_f32 v{T}, v{a0}, v{a1}
            v_sub_f32 v{T+1}, v{b0}, v{b1}
            v_sub_f32 v{T+2}, v{a0}, v{a1}
            v_add_f32 v{T+3}, v{b0}, v{b1}
            v_mul_f32 v{T}, {fh(SC)}, v{T}
            v_mul_f32 v{T+1}, {fh(SC)}, v{T+1}
            v_fma_f32 v{co(t,r,0)}, -v{T+2}, v{TH+2*t}, v{T}
            v_fma_f32 v{co(t,r,1)}, -v{T+3}, v{TH+2*t}, v{T+1}
            v_fma_f32 v{co(t,r,2)}, v{T+2}, v{TH+2*t}, v{T}
            v_fma_f32 v{co(t,r,3)}, v{T+3}, v{TH+2*t}, v{T+1}
            v_mul_f32 v{co(t,r,4)}, v{T+2}, v{TH+2*t+1}
            v_mul_f32 v{co(t,r,5)}, v{T+3}, v{TH+2*t+1}''')
    a(f'''s_or_b32 s{sT}, s{sW}, s{sB}
    s_cselect_b32 s{sSPEC}, 0, s{sSPEC}
    s_cmp_eq_u32 s{sSPEC}, 0''')
    aMir = C1+28
    with a.cond('s_cbranch_scc1'):
        a('s_mov_b32 exec_hi, 0')
        for r in range(4):
            a(f'v_mul_f32 v{co(0,r,2)}, {fh(2*SC)}, v{SP+6*r+4}\nv_mul_f32 v{co(0,r,3)}, {fh(2*SC)}, v{SP+6*r+5}')
        a('s_mov_b64 exec, -1')
        a(f'''v_and_b32 v{T}, 1, v{vG}
        v_lshl_add_u32 v{T}, v{T}, 6, v{vJ}
        v_lshlrev_b32 v{aMir}, 3, v{T}
        v_add_u32 v{aMir}, {MIR}, v{aMir}
        s_cmp_eq_u32 s{sA}, 0
        s_cselect_b32 s{sT}, 0, -1''')
        for r in range(4):
            a(f'''v_add_u32 v{T+1}, {16*r}, v{T}
            v_sub_u32 v{T+1}, s{sT}, v{T+1}
            v_and_b32 v{T+1}, 127, v{T+1}
            v_lshlrev_b32 v{T+1}, 3, v{T+1}
            v_add_u32 v{aMir+1+r}, {MIR}, v{T+1}''')
    a.wait_vm_tag('dma')
    a('s_barrier')
    stamp(a, 6)
    for t in range(2):
        for pq in range(2):
            for h in range(2):
                a(f'ds_read2st64_b32 {vr(X+4*(2*t+pq)+2*h,2)}, v{aI2+2*t+pq} offset0:{16*h} offset1:{16*h+8}')
    for tile in range(4):
        for part in range(2):
            a(f'{MF16} {vr(acc(tile,part),4)}, {vr(X+4*tile,4)}, {vr(M1+4*part,4)}, 0')
    for tile in range(4):
        twiddle(a, X+4*tile, acc(tile,0), acc(tile,1), T1, T)
        for part in range(2):
            a(f'{MF16} {vr(acc(tile,part),4)}, {vr(M8+4*part,4)}, {vr(X+4*tile,4)}, 0')
    def mult(t, YP, YQ):
        Pr, Pi, Qr, Qi = acc(2*t,0), acc(2*t,1), acc(2*t+1,0), acc(2*t+1,1)
        for r0 in (0, 2):
            rs = (r0, r0+1); tm = lambda r, k: T + 4*(r-r0) + k
            for r in rs:
                a(f'''v_mul_f32 v{tm(r,0)}, v{co(t,r,0)}, v{Pr+r}
                v_mul_f32 v{tm(r,1)}, v{co(t,r,0)}, v{Pi+r}
                v_mul_f32 v{tm(r,2)}, v{co(t,r,2)}, v{Qr+r}
                v_mul_f32 v{tm(r,3)}, v{co(t,r,2)}, v{Qi+r}''')
            for r in rs:
                a(f'''v_fma_f32 v{tm(r,0)}, -v{co(t,r,1)}, v{Pi+r}, v{tm(r,0)}
                v_fmac_f32 v{tm(r,1)}, v{co(t,r,1)}, v{Pr+r}
                v_fma_f32 v{tm(r,2)}, -v{co(t,r,3)}, v{Qi+r}, v{tm(r,2)}
                v_fmac_f32 v{tm(r,3)}, v{co(t,r,3)}, v{Qr+r}''')
            for r in rs:
                a(f'''v_fma_f32 v{tm(r,0)}, -v{co(t,r,4)}, v{YP[1]+r}, v{tm(r,0)}
                v_fmac_f32 v{tm(r,1)}, v{co(t,r,4)}, v{YP[0]+r}
                v_fmac_f32 v{tm(r,2)}, v{co(t,r,4)}, v{YQ[1]+r}
                v_fma_f32 v{tm(r,3)}, -v{co(t,r,4)}, v{YQ[0]+r}, v{tm(r,3)}''')
            for r in rs:
                a(f'''v_fma_f32 v{tm(r,0)}, -v{co(t,r,5)}, v{YP[0]+r}, v{tm(r,0)}
                v_fma_f32 v{tm(r,1)}, -v{co(t,r,5)}, v{YP[1]+r}, v{tm(r,1)}
                v_fmac_f32 v{tm(r,2)}, v{co(t,r,5)}, v{YQ[0]+r}
                v_fmac_f32 v{tm(r,3)}, v{co(t,r,5)}, v{YQ[1]+r}''')
            for r in rs:
                a(f'v_cvt_pk_bf16_f32 v{X+8*t+r}, v{tm(r,1)}, v{tm(r,0)}')
                a(f'v_cvt_pk_bf16_f32 v{X+8*t+4+r}, v{tm(r,3)}, v{tm(r,2)}')
    def mult_norm(t): mult(t, (acc(2*t+1,0), acc(2*t+1,1)), (acc(2*t,0), acc(2*t,1)))
    def mult_spec():
        YP, YQ = L, L+8
        a('s_mov_b32 exec_hi, 0')
        for r in range(4):
            a(f'ds_write2_b32 v{aMir}, v{acc(0,0)+r}, v{acc(0,1)+r} offset0:{32*r} offset1:{32*r+1}')
        for r in range(4):
            a(f'ds_read_b64 {vr(T+2*r,2)}, v{aMir+1+r}')
        a('s_mov_b64 exec, -1')
        for k in range(8):
            a(f'v_mov_b32 v{YP+k}, v{acc(1,0)+k}\nv_mov_b32 v{YQ+k}, v{acc(0,0)+k}')
        a('s_mov_b32 exec_hi, 0')
        for r in range(4):
            a(f'v_mov_b32 v{YP+r}, v{T+2*r}\nv_xor_b32 v{YP+4+r}, 0x80000000, v{T+2*r+1}')
        for k in range(8): a(f'v_mov_b32 v{YQ+k}, 0')
        a('s_mov_b64 exec, -1')
        mult(0, (YP, YP+4), (YQ, YQ+4))
    def istage1(t):
        for tile in (2*t, 2*t+1):
            for part in range(2):
                a(f'{MF16} {vr(acc(tile,part),4)}, {vr(X+4*tile,4)}, {vr(M8+4*part,4)}, 0')
    a(f's_cmp_lg_u32 s{sSPEC}, 0')
    a.ifelse('s_cbranch_scc1', lambda: mult_norm(0), mult_spec)
    istage1(0)
    mult_norm(1)
    istage1(1)
    for tile in range(4):
        twiddle(a, X+4*tile, acc(tile,0), acc(tile,1), T1i, T)
        for part in range(2):
            a(f'{MF16} {vr(acc(tile,part),4)}, {vr(M1i+4*part,4)}, {vr(X+4*tile,4)}, 0')
    for pq in range(2):
        for r in range(4):
            for t in range(2):
                a(f'v_cvt_pk_bf16_f32 v{L+8*pq+2*r+t}, v{acc(2*t+pq,0)+r}, v{acc(2*t+pq,1)+r}')
            a(f'ds_write_b64 v{aO2w}, {vr(L+8*pq+2*r,2)} offset:{8*272*r+128*pq}')
    a(f's_lshl_b32 s{sT}, s{sW}, 19\ns_add_u32 s{sT}, s{sT}, {Z2}')
    a('s_waitcnt lgkmcnt(0)\ns_barrier')
    for q in range(4):
        a(f'ds_read_b128 {vr(X+4*q,4)}, v{aO2r} offset:{4*272*q}')
    for q in range(4):
        a(f'buffer_store_dwordx4 {vr(X+4*q,4)}, v{aZ2}, {srd(sWS)}, s{sT} offen sc1')
        if q < 3: a(f's_add_u32 s{sT}, s{sT}, {4*32768}')
    stamp(a, 7)
    a('s_waitcnt vmcnt(0)\ns_barrier')
    stamp(a, 8)
    a(f's_cmp_lg_u32 s{sW}, 0')
    with a.cond('s_cbranch_scc1'):
        a(f'''s_mul_i32 s{sT}, s2, {FLS}
        s_add_u32 s{sT}, s{sT}, {FL2}
        v_mov_b32 v{T}, s{sT}
        v_mov_b32 v{T+1}, s{sNONCE}
        s_mov_b64 exec, 1
        buffer_store_dword v{T+1}, v{T}, {srd(sWS)}, 0 offen sc1
        s_mov_b64 exec, -1''')
    a(f'''v_add_f32 v{T}, v{fJ}, v{fJ}
    v_add_f32 v{T+1}, 1.0, v{T}
    v_mul_f32 v{T+2}, 0x3e000000, v{fG}
    v_mul_f32 v{AR}, v{T}, v{T+2}
    v_mul_f32 v{AR+4}, v{T+1}, v{T+2}''')
    args4(a, AR, T, AR, 1/32); args4(a, AR+4, T+1, AR+4, 1/32)
    matrix(a, MD2, MD2+4, [AR+m for m in range(4)], ACC)
    matrix(a, MD2+8, MD2+12, [AR+4+m for m in range(4)], ACC+8)
    for m in range(8): a(f'v_xor_b32 v{MD2+16+m}, 0x80008000, v{MD2+8+m}')
    a(f'''v_mul_f32 v{T+2}, {fh(1/128)}, v{fG}
    v_mul_f32 v{AR}, v{T}, v{T+2}
    v_mul_f32 v{AR+4}, v{T+1}, v{T+2}''')
    args4(a, AR, T, AR, 1/512); args4(a, AR+4, T+1, AR+4, 1/512)
    trig4(a, [AR+m for m in range(8)], TW)
    a(f'v_mul_f32 v{T+2}, 0x3e800000, v{fG}\nv_mul_f32 v{AR}, v{fJ}, v{T+2}')
    args4(a, AR, fJ, AR, 1/16)
    matrix(a, MD1, MD1+4, [AR+m for m in range(4)], ACC)
    a(f'''v_mul_f32 v{T+2}, 0x3e000000, v{fG}
    v_mul_f32 v{AR}, v{fJ}, v{T+2}
    v_fmamk_f32 v{AR+2}, v{fJ}, {fh(1/16)}, v{AR}
    v_mul_f32 v{T+3}, 0.5, v{fJ}
    v_cmp_eq_u32 vcc, 0, v{vG}
    v_cndmask_b32 v{AR+1}, v{AR}, v{T+3}, vcc
    v_mov_b32 v{T+4}, 0x80008000
    v_cndmask_b32 v{T+4}, v{T+4}, 0, vcc''')
    matrix(a, MR+4, MR, [AR, AR+1, AR+2], ACC)
    a(f'''v_mov_b32 v{MR+3}, v{MR+2}
    v_xor_b32 v{MR+7}, 0x80008000, v{MR+6}
    v_xor_b32 v{MR+5}, v{T+4}, v{MR+5}''')
    aZ3, aE3w, aE3r, aOut = aX, aE1w, aE1r, aZ
    a(f'''s_lshl_b32 s{sT}, s{sW}, 12
    s_lshl_b32 s{sT+1}, s2, 15
    s_add_u32 s{sT+1}, s{sT+1}, {Z2}
    s_add_u32 s{sT}, s{sT}, s{sT+1}
    v_lshlrev_b32 v{T}, 8, v{vG}
    v_lshl_add_u32 v{T}, v{vJ}, 3, v{T}
    v_add_u32 v{aZ3}, s{sT}, v{T}
    v_mul_u32_u24 v{T}, {4*2312}, v{vG}
    v_mul_u32_u24 v{T+1}, 72, v{vJ}
    s_lshl_b32 s{sT}, s{sW}, 3
    v_add3_u32 v{aE3w}, v{T}, v{T+1}, s{sT}
    v_lshrrev_b32 v{T}, 3, v{vJ}
    v_mul_u32_u24 v{T}, 2312, v{T}
    v_and_b32 v{T+1}, 7, v{vJ}
    v_mul_u32_u24 v{T+1}, 144, v{T+1}
    v_lshl_add_u32 v{T+1}, v{vG}, 4, v{T+1}
    s_mul_i32 s{sT}, s{sW}, {2*2312}
    v_add3_u32 v{aE3r}, v{T}, v{T+1}, s{sT}
    s_lshl_b32 s{sT}, s{sW}, 8
    v_lshlrev_b32 v{T}, 21, v{vG}
    v_lshl_add_u32 v{T}, v{vJ}, 4, v{T}
    v_add_u32 v{aOut}, s{sT}, v{T}
    s_lshl_b32 s{sM}, s2, 12
    s_add_u32 s{sM+1}, s{sM}, {128*4096}
    s_add_u32 s{sM+2}, s{sM}, {2*128*4096}
    s_add_u32 s{sM+3}, s{sM}, {3*128*4096}
    s_cmp_lg_u32 s{sW}, 0''')
    with a.cond('s_cbranch_scc1'):
        for m in range(4):
            a(f'''v_lshl_or_b32 v{T}, v{vG}, 2, {m}
            v_lshl_add_u32 v{T}, v{T}, 4, v{vJ}
            v_sub_u32 v{T}, 256, v{T}
            v_and_b32 v{T+1}, 0xe0, v{T}
            v_and_b32 v{T+2}, 15, v{T}
            v_lshl_or_b32 v{T+1}, v{T+2}, 1, v{T+1}
            v_bfe_u32 v{T+2}, v{T}, 4, 1
            v_or_b32 v{T+1}, v{T+1}, v{T+2}
            v_lshlrev_b32 v{T+1}, 2, v{T+1}
            v_add_u32 v{aSp+m}, s{sT+1}, v{T+1}''')
        poll(a, FL2, aFl, T)
    a('s_barrier')
    stamp(a, 9)
    def ld3(wh, t):
        for y in range(2):
            a(f'buffer_load_dwordx2 {vr(X+8*wh+4*t+2*y,2)}, v{aZ3}, {srd(sWS)}, 0 offen offset:{2048*wh+1024*t+128*y} sc1')
    def norm3():
        for wh in range(2):
            ld3(wh, 0); ld3(wh, 1)
    def spec3():
        for wh in range(2):
            ld3(wh, 0)
            for m in range(4):
                a(f'buffer_load_dword v{X+8*wh+4+m}, v{aSp+m}, {srd(sWS)}, 0 offen offset:{2048*wh+1024} sc1')
        for wh in range(2):
            for m in range(4): a(f'v_xor_b32 v{X+8*wh+4+m}, 0x8000, v{X+8*wh+4+m}')
    a(f's_cmp_eq_u32 s{sW}, 0')
    a.ifelse('s_cbranch_scc1', norm3, spec3)
    for wh in range(2):
        for N in range(2):
            for part in range(2):
                a(f'{MF16} {vr(acc(2*wh+N,part),4)}, {vr(X+8*wh,4)}, {vr(MD2+8*N+4*part,4)}, 0')
        if wh == 0: stamp(a, 10)
        for N in range(2):
            for part in range(2):
                a(f'{MF16} {vr(acc(2*wh+N,part),4)}, {vr(X+8*wh+4,4)}, {vr(MD2+16*N+4*part,4)}, {vr(acc(2*wh+N,part),4)}')
    for tile in range(4):
        twiddle(a, L+4*tile, acc(tile,0), acc(tile,1), TW+8*(tile&1), T)
        for part in range(2):
            a(f'{MF16} {vr(acc(tile,part),4)}, {vr(MD1+4*part,4)}, {vr(L+4*tile,4)}, 0')
    for N in range(2):
        for r in range(4):
            for wh in range(2):
                a(f'v_cvt_pk_bf16_f32 v{X+8*N+2*r+wh}, v{acc(2*wh+N,0)+r}, v{acc(2*wh+N,1)+r}')
            a(f'ds_write_b64 v{aE3w}, {vr(X+8*N+2*r,2)} offset:{E3+2312*r+1152*N}')
    a('s_waitcnt lgkmcnt(0)\ns_barrier')
    for t in range(4):
        for h in range(2):
            a(f'ds_read_b64 {vr(L+4*t+2*h,2)}, v{aE3r} offset:{E3+1152*(t&1)+72*(t>>1)+8*h}')
    for t in range(4):
        for part in range(2):
            a(f'{MF16} {vr(acc(t,part),4)}, {vr(MR+4*part,4)}, {vr(L+4*t,4)}, 0')
    for r in range(4):
        for t in range(4):
            a(f'v_cvt_pk_bf16_f32 v{X+4*r+t}, v{acc(t,0)+r}, v{acc(t,1)+r}')
        a(f'buffer_store_dwordx4 {vr(X+4*r,4)}, v{aOut}, {srd(sOUT)}, s{sM+r} offen')
    stamp(a, 11)
    if OPT['stamps']:
        a('s_waitcnt vmcnt(0)')
        stamp(a, 12)
        stamps_out(a, 13, T, {k: k for k in range(13)})
    calib(a)
    a('s_endpgm')
    a.label('L_A_end')
    a.reset_counters()

P_ROWS = list(range(9)) + [256,258,260,262,264] + [512,516,520,768,772,776] + [1024,1032,1280,1288,1536,1544,1792,1800]
def d_rows():
    h0 = list(range(9)) + [512,516,520] + [1024,1032] + [1536,1544]
    h1 = [256,256,258,260,260,260,262,264,264] + [768,772,776] + [1280,1288] + [1792,1800]
    return h0, h1
def place_rows():
    h0, h1 = d_rows()
    row = lambda i: (h0, h1)[(i >> 2) & 1][4*(i >> 3) + (i & 3)]
    G1 = {row(i) for i in itertools.chain(range(0,4), range(12,16), range(20,28))}
    G2 = {row(i) for i in itertools.chain(range(4,12), range(16,20), range(28,32))}
    both = sorted(G1 & G2); o1 = sorted(G1 - G2); o2 = sorted(G2 - G1)
    phys = {}
    single = [44, 45, 46, 47]
    for l0 in both: phys[l0] = single.pop(0)
    pair = list(range(12))
    while o1 and o2 and pair:
        r = pair.pop(0); phys[o1.pop(0)] = 32 + r; phys[o2.pop(0)] = 48 + r
    free = single + [32 + r for r in pair]
    for l0 in o1 + o2: phys[l0] = free.pop(0)
    assert sorted(phys) == sorted(P_ROWS) and len(set(phys.values())) == len(phys) and max(phys.values()) < 60
    for G in (G1, G2): assert len({phys[x] % 16 for x in G}) == len(G)
    return phys, [phys[row(i)] for i in range(32)]

def gen_B(a):
    vL, vJ, vG, vJ32 = 1, 2, 3, 4
    T = 5
    UL = 16
    PR = 32
    D = 40
    FR = 56
    W_ = 120
    ACC = 160
    BAND = 192
    GA = 200
    AD = 232
    aTA, aTB, aKw, aKe, aK3z, aK3w, aUw, aUz, aKA, aUB, aK3r, aSw, aSr, aOut, mTop, mBot = range(AD, AD+16)
    vDT, vDS = 248, 249
    KC = 64; KP = 2240; KW = 4*KP; K3 = KC + 8*KW; U = K3 + 8*1536; UP = 4608; ST = U + 8*UP; SP_ = 2112; STB = 8*SP_
    assert ST + 2*STB <= LDS_BYTES, ST + 2*STB
    TP = 272
    sP = 28 + 12
    sD0 = 56; sSE, sSO = 57, 58; sH = 59
    phys, rowmap = place_rows()

    a.label('L_B')
    prefetch_code(a, 'L_B', 'L_B_end', 250)
    a(f'''s_load_dwordx4 s[{sP}:{sP+3}], s[0:1], 32
    s_load_dwordx4 s[{sP+4}:{sP+7}], s[0:1], 48
    s_load_dwordx4 s[{sP+8}:{sP+11}], s[0:1], 64
    s_load_dwordx4 s[{sP+12}:{sP+15}], s[0:1], 80
    s_load_dwordx2 s[{sX}:{sX+1}], s[0:1], 24
    s_load_dwordx2 s[{sOUT}:{sOUT+1}], s[0:1], 96
    s_load_dwordx2 s[{sWS}:{sWS+1}], s[0:1], 112
    s_mov_b32 s{sWS+2}, {WS_SIZE}
    s_mov_b32 s{sWS+3}, 0x20000
    s_mov_b32 s{sX+2}, 4194304
    s_mov_b32 s{sX+3}, 0x20000
    s_mov_b32 s{sOUT+2}, 8388608
    s_mov_b32 s{sOUT+3}, 0x20000
    v_lshrrev_b32 v{T+2}, 6, v0
    v_and_b32 v{vL}, 63, v0
    v_readfirstlane_b32 s{sW}, v{T+2}
    v_and_b32 v{vJ}, 15, v0
    v_bfe_u32 v{vG}, v0, 4, 2
    v_and_b32 v{vJ32}, 31, v0
    s_and_b32 s{sT}, s2, 7
    s_lshl_b32 s{sT}, s{sT}, 7
    s_bfe_u32 s{sT+1}, s2, 0x40003
    s_lshl_b32 s{sT+2}, s{sT+1}, 3
    s_add_u32 s{sD0}, s{sT}, s{sT+2}
    s_add_u32 s{sT}, s{sD0}, s{sW}
    s_lshl_b32 s{sT+2}, s{sT}, 8
    s_lshl_b32 s{sT}, s{sT}, 1
    v_lshl_add_u32 v{T+2}, v{vL}, 2, s{sT+2}
    v_mov_b32 v{T+3}, s{sT}
    s_and_b32 s{sT+1}, s{sT+1}, 7
    s_lshl_b32 s{sT+1}, s{sT+1}, 6
    v_add_u32 v{T+4}, s{sT+1}, v0
    v_and_b32 v{T+4}, 0x1ff, v{T+4}
    s_lshl_b32 s{sT}, s{sD0}, 1
    v_lshl_add_u32 v{T+5}, v{T+4}, 12, s{sT}
    s_mov_b32 s{sH}, 0x200000''')
    a(f'global_load_short_d16_hi v{PR+6}, v{T+3}, s[{sP+12}:{sP+13}]')
    for k in range(6):
        a(f'global_load_dword v{PR+k}, v{T+2}, s[{sP+2*k}:{sP+2*k+1}]')
    a(f'global_load_short_d16_hi v{vDS}, v{T+3}, s[{sP+14}:{sP+15}]')
    for hf in range(2):
        for par in range(2):
            so = f's{sH}' if hf else '0'
            a(f'buffer_load_dwordx4 {vr(UL+8*hf+4*par,4)}, v{T+5}, {srd(sX)}, {so} offen offset:{2048*par}')
    stamp(a, 1)
    a(f'''v_lshlrev_b32 v{aUw}, 2, v{T+4}
    v_add_u32 v{aUw}, {U+512}, v{aUw}
    s_mul_i32 s{sT}, s{sW}, {UP}
    s_add_u32 s{sT}, s{sT}, {U}
    v_lshl_add_u32 v{aUz}, v{vL}, 3, s{sT}
    v_lshlrev_b32 v{T}, 4, v{vG}
    v_lshl_add_u32 v{T}, v{vJ}, 5, v{T}
    v_add_u32 v{aUB}, s{sT}, v{T}
    s_lshl_b32 s{sT}, s{sW}, 14
    s_mov_b32 m0, s{sT}
    v_lshrrev_b32 v{T+1}, 5, v{vL}
    v_lshl_add_u32 v{T+2}, v{T+1}, 4, s{sT}
    v_mul_u32_u24 v{aTB}, {TP}, v{vJ32}
    v_add_u32 v{aTB}, v{aTB}, v{T+2}''')
    words = [sum((rowmap[4*k+b]) << (8*b) for b in range(4)) for k in range(8)]
    a(f'v_lshrrev_b32 v{T+3}, 2, v{vJ32}\nv_mov_b32 v{T+4}, {hex(words[0])}')
    for k in range(1, 8):
        a(f'v_cmp_eq_u32 vcc, {k}, v{T+3}\nv_mov_b32 v{T+5}, {hex(words[k])}\nv_cndmask_b32 v{T+4}, v{T+4}, v{T+5}, vcc')
    a(f'''v_and_b32 v{T+3}, 3, v{vL}
    v_lshlrev_b32 v{T+5}, 3, v{T+3}
    v_bfe_u32 v{T+4}, v{T+4}, v{T+5}, 8
    v_mul_u32_u24 v{aTA}, {TP}, v{T+4}
    v_add_u32 v{aTA}, v{aTA}, v{T+2}''')
    a(f'''s_mul_i32 s{sT}, s{sW}, {KW}
    s_add_u32 s{sT}, s{sT}, {KC}
    v_lshlrev_b32 v{T+4}, 9, v{T+1}
    v_lshl_add_u32 v{T+4}, v{vJ32}, 4, v{T+4}
    v_add_u32 v{aKw}, s{sT}, v{T+4}
    v_mul_u32_u24 v{T+4}, {KP}, v{vG}
    v_lshl_add_u32 v{T+4}, v{vJ}, 2, v{T+4}
    v_add_u32 v{aKe}, s{sT}, v{T+4}
    v_bfe_u32 v{T+5}, v{vL}, 2, 2
    v_mul_u32_u24 v{T+4}, {KP}, v{T+5}
    v_lshl_add_u32 v{T+4}, v{T+3}, 3, v{T+4}
    v_lshlrev_b32 v{T+6}, 4, v{vG}
    v_sub_u32 v{T+4}, v{T+4}, v{T+6}
    v_add_u32 v{aKA}, s{sT}, v{T+4}
    s_mul_i32 s{sT}, s{sW}, 1536
    s_add_u32 s{sT}, s{sT}, {K3}
    v_lshrrev_b32 v{T+4}, 3, v{vL}
    v_mul_u32_u24 v{T+4}, 192, v{T+4}
    v_and_b32 v{T+6}, 7, v{vL}
    v_lshl_add_u32 v{T+4}, v{T+6}, 3, v{T+4}
    v_add_u32 v{aK3z}, s{sT}, v{T+4}
    v_lshlrev_b32 v{T+4}, 5, v{T+1}
    v_and_b32 v{T+6}, 30, v{vL}
    v_add3_u32 v{aK3w}, v{T+4}, v{T+6}, s{sT}
    v_mul_u32_u24 v{T+4}, 192, v{T+5}
    v_lshl_add_u32 v{T+4}, v{T+3}, 3, v{T+4}
    v_lshlrev_b32 v{T+6}, 3, v{vG}
    v_sub_u32 v{T+4}, v{T+4}, v{T+6}
    v_add_u32 v{aK3r}, s{sT}, v{T+4}
    s_mul_i32 s{sT}, s{sW}, {SP_}
    s_add_u32 s{sT}, s{sT}, {ST}
    v_lshlrev_b32 v{T+4}, 5, v{vJ}
    v_lshl_add_u32 v{T+4}, v{vG}, 3, v{T+4}
    v_add_u32 v{aSw}, s{sT}, v{T+4}
    s_lshl_b32 s{sT}, s{sW}, 8
    s_add_u32 s{sT}, s{sT}, {ST}
    v_mul_u32_u24 v{T+4}, {SP_}, v{T+5}
    v_lshl_add_u32 v{T+4}, v{T+3}, 3, v{T+4}
    v_lshl_add_u32 v{T+4}, v{vG}, 5, v{T+4}
    v_add_u32 v{aSr}, s{sT}, v{T+4}
    s_lshl_b32 s{sT}, s{sW}, 19
    s_lshl_b32 s{sT+1}, s{sD0}, 1
    s_add_u32 s{sT}, s{sT}, s{sT+1}
    s_add_u32 s{sT}, s{sT}, 2048
    v_lshl_add_u32 v{aOut}, v{vL}, 12, s{sT}
    s_mov_b32 s{sSE}, 0x05040100
    s_mov_b32 s{sSO}, 0x07060302''')
    a(f'''v_lshlrev_b32 v{T+4}, 1, v{vJ}
    v_sub_u32 v{T+4}, v{T+4}, v{vG}
    v_cmp_ge_i32 vcc, 4, v{T+4}
    v_mov_b32 v{T+6}, 0xffff
    v_cndmask_b32 v{mTop}, 0, v{T+6}, vcc
    v_cmp_ge_i32 vcc, 3, v{T+4}
    v_cndmask_b32 v{mTop}, v{mTop}, -1, vcc
    v_cmp_eq_u32 vcc, 11, v{T+4}
    v_mov_b32 v{T+6}, 0xffff0000
    v_cndmask_b32 v{mBot}, 0, v{T+6}, vcc''')
    for p, (msk, sh) in enumerate(((0x1ff, 4), (0x7f, 5))):
        a(f'''v_add_u32 v{T+4}, {sh}, v{vJ}
        v_mov_b32 v{T+6}, {msk}
        v_lshlrev_b32 v{T+4}, v{T+4}, v{T+6}
        v_lshlrev_b32 v{T+6}, 3, v{vG}
        v_lshrrev_b32 v{T+4}, v{T+6}, v{T+4}''')
        for m in range(4):
            a(f'''v_bfe_i32 v{T+6}, v{T+4}, {2*m}, 1
            v_bfe_i32 v{T+7}, v{T+4}, {2*m+1}, 1
            v_and_b32 v{T+6}, 0x3f80, v{T+6}
            v_and_b32 v{T+7}, 0x3f800000, v{T+7}
            v_or_b32 v{BAND+4*p+m}, v{T+6}, v{T+7}''')
    L2E = math.log2(math.e)
    hi = struct.unpack('<f', struct.pack('<f', L2E))[0]; lo = L2E - hi
    a(f'''v_mul_f32 v{T}, {fh(hi)}, v{PR+6}
    v_mov_b32 v{T+2}, {fh(hi)}
    v_fma_f32 v{T+1}, v{PR+6}, v{T+2}, -v{T}
    v_fmamk_f32 v{T+1}, v{PR+6}, {fh(lo)}, v{T+1}
    v_exp_f32 v{T}, v{T}
    v_mul_f32 v{T+1}, {fh(math.log(2))}, v{T+1}
    v_fmac_f32 v{T}, v{T}, v{T+1}
    v_cvt_pk_bf16_f32 v{T}, v{T}, v{T}
    v_and_b32 v{vDT}, 0xffff0000, v{T}''')
    stamp(a, 2)

    def kpass(p):
        o = []
        e = o.append
        R = W_
        Ar, Ai, Br, Bi, Cr, Ci = range(R, R+6)
        for k in range(6):
            if p == 0: e(f'v_lshlrev_b32 v{R+k}, 16, v{PR+k}')
            else: e(f'v_and_b32 v{R+k}, 0xffff0000, v{PR+k}')
        for k in range(4): e(f'v_mul_f32 v{R+k}, v{vDT}, v{R+k}')
        e(f'v_mul_f32 v{Ar}, {fh(L2E)}, v{Ar}')
        e(f'v_mul_f32 v{Ai}, {fh(1/(2*math.pi))}, v{Ai}')
        w1, w8, w128, w256, w2, w4, c = [R+6+2*i for i in range(7)]
        tm = R+20
        ls = ((w8, 8), (w128, 128), (w1, 1), (w256, 256))
        for i, (w, l) in enumerate(ls):
            if l == 1:
                e(f'v_exp_f32 v{tm+3*i}, v{Ar}'); e(f'v_fract_f32 v{tm+3*i+1}, v{Ai}')
            else:
                e(f'v_mul_f32 v{tm+3*i}, {fh(l)}, v{Ar}'); e(f'v_mul_f32 v{tm+3*i+1}, {fh(l)}, v{Ai}')
                e(f'v_exp_f32 v{tm+3*i}, v{tm+3*i}'); e(f'v_fract_f32 v{tm+3*i+1}, v{tm+3*i+1}')
        e(f'v_mul_f32 v{c}, v{Cr}, v{Br}'); e(f'v_mul_f32 v{c+1}, v{Cr}, v{Bi}')
        for i, (w, l) in enumerate(ls):
            e(f'v_cos_f32 v{w}, v{tm+3*i+1}'); e(f'v_sin_f32 v{w+1}, v{tm+3*i+1}')
        e(f'v_fma_f32 v{c}, -v{Ci}, v{Bi}, v{c}'); e(f'v_fmac_f32 v{c+1}, v{Ci}, v{Br}')
        for i, (w, l) in enumerate(ls):
            e(f'v_mul_f32 v{w}, v{w}, v{tm+3*i}'); e(f'v_mul_f32 v{w+1}, v{w+1}, v{tm+3*i}')
        cv = [T+k for k in range(8)]; cvi = [0, 0]
        def put(row, re, im, neg):
            d = cv[2*cvi[0] + (cvi[1] & 1)]; cvi[1] += 1
            return [f'v_cvt_pk_bf16_f32 v{d}, v{re}, {"-" if neg else ""}v{im}', f'ds_write_addtid_b32 v{d} offset:{row*TP}']
        def cmul(d, x, y):
            return [f'v_mul_f32 v{d}, v{x}, v{y}', f'v_mul_f32 v{d+1}, v{x}, v{y+1}',
                    f'v_fma_f32 v{d}, -v{x+1}, v{y+1}, v{d}', f'v_fmac_f32 v{d+1}, v{x+1}, v{y}']
        def sq(d, x):
            return [f'v_mul_f32 v{d}, v{x}, v{x}', f'v_add_f32 v{d+1}, v{x}, v{x}',
                    f'v_fma_f32 v{d}, -v{x+1}, v{x+1}, v{d}', f'v_mul_f32 v{d+1}, v{d+1}, v{x+1}']
        qa = [tm, tm+2]; qb = [tm+4, tm+6]; pa = [tm+8, tm+10]; pb = [R, R+2]; pc = [R+4, tm+12]
        chA = [[f'v_mov_b32 v{cv[1]}, 0x3f80', f'ds_write_addtid_b32 v{cv[1]} offset:0'] + put(1, w8, w8+1, 0)]
        cur = w8
        for j in range(2, 16):
            d = qa[j & 1]; chA.append(cmul(d, cur, w8) + put(j, d, d+1, 0)); cur = d
        cvi[0] = 1
        chB = [put(16, w128, w128+1, 0)]; cur = w128
        for j in range(17, 32):
            d = qb[j & 1]; chB.append(cmul(d, cur, w8) + put(j, d, d+1, 0)); cur = d
        cvi[0] = 2
        chC = [put(phys[0], c, c+1, 1), sq(w2, w1), sq(w4, w2)]; cur = c
        for l in range(1, 9):
            d = pa[l & 1]; chC.append(cmul(d, cur, w1) + put(phys[l], d, d+1, 1)); cur = d
        cvi[0] = 3
        chD = []; cur = c
        for k in range(1, 8):
            d = pb[k & 1]; chD.append(cmul(d, cur, w256) + put(phys[256*k], d, d+1, 1)); cur = d
            if k == 1: br = [(w2, 258), (w2, 260), (w2, 262), (w2, 264)]
            elif k < 4: br = [(w4, 256*k+4), (w4, 256*k+8)]
            else: br = [(w8, 256*k+8)]
            c2 = d
            for n, (w, l) in enumerate(br):
                d2 = pc[n & 1]; chD.append(cmul(d2, c2, w) + put(phys[l], d2, d2+1, 1)); c2 = d2
        for st in chC[:3]: o += st
        chains = [chA, chB, chC[3:], chD]
        order = []
        idx = [0]*4; lens = [len(x) for x in chains]
        while any(idx[i] < lens[i] for i in range(4)):
            cand = sorted([i for i in range(4) if idx[i] < lens[i]], key=lambda i: -(lens[i]-idx[i]))[:2]
            steps = [chains[i][idx[i]] for i in cand]
            for i in cand: idx[i] += 1
            for tup in itertools.zip_longest(*steps):
                o += [x for x in tup if x]
        return o
    def treads():
        for s in range(8):
            a(f'ds_read_b128 {vr(FR+8*s,4)}, v{aTA} offset:{32*s}')
            a(f'ds_read_b128 {vr(FR+8*s+4,4)}, v{aTB} offset:{32*s}')
    def kmf(s, first):
        return f'{MF32} {vr(D,16)}, {vr(FR+8*s,4)}, {vr(FR+8*s+4,4)}, {"0" if first else vr(D,16)}'
    for x in kpass(0): a(x)
    treads()
    p2 = kpass(1)
    pos = {30 + 12*s: s for s in range(8)}
    for k, x in enumerate(p2):
        if k in pos: a(kmf(pos[k], pos[k] == 0))
        a(x)
    treads()
    stamp(a, 3)
    for s in range(8): a(kmf(s, False))
    a('s_barrier')
    a('v_mov_b32 v6, 0\nv_mov_b32 v7, 0')
    a(f'ds_write_b64 v{aUz}, v[6:7]')
    a(f'ds_write_b64 v{aK3z}, v[6:7]')
    def uwrite(hf):
        for c in range(8):
            d = W_ + c
            a(f'v_perm_b32 v{d}, v{UL+8*hf+4+(c>>1)}, v{UL+8*hf+(c>>1)}, s{sSO if c&1 else sSE}')
            a(f'ds_write_b32 v{aUw}, v{d} offset:{UP*c+2048*hf}')
    a('s_mov_b64 exec, 1')
    a(f'v_add_f32 v{D}, v{D}, v{vDS}')
    a('s_mov_b64 exec, -1')
    EV, OD = FR, FR+8
    pk = lambda d, x, y: a(f'v_cvt_pk_bf16_f32 v{d}, v{D+x}, v{D+y}')
    pk(T+3, 0, 0); pk(T+4, 12, 12)
    a(f'v_readlane_b32 s{sT}, v{T+3}, 0\nv_readlane_b32 s{sT+1}, v{T+4}, 0')
    for m in range(4): pk(EV+m, 2*m, 2*m+1)
    for m in range(4): pk(OD+m, 2*m+1, 2*m+2)
    a(f'v_and_b32 v{T+3}, s{sT}, v{mBot}\nv_and_b32 v{T+4}, s{sT+1}, v{mTop}')
    a(f'ds_write_b32 v{aKe}, v{T+3} offset:8')
    a(f'ds_write_b32 v{aKe}, v{T+4} offset:{2*(1024+16)}')
    for m, (x, y) in enumerate(((9,9),(9,10),(10,10),(11,11))): pk(EV+4+m, x, y)
    for m, (x, y) in enumerate(((9,9),(10,10),(10,11),(11,11))): pk(OD+4+m, x, y)
    for sl in range(2):
        b = 32 + 1024*sl
        a(f'ds_write_b128 v{aKw}, {vr(EV+4*sl,4)} offset:{b}')
        for h in range(2):
            a(f'ds_write_b64 v{aKw}, {vr(OD+4*sl+2*h,2)} offset:{3*KP+b+8+8*h}')
        for m in range(4):
            a(f'ds_write_b32 v{aKw}, v{EV+4*sl+m} offset:{2*KP+b+4+4*m}')
            a(f'ds_write_b32 v{aKw}, v{OD+4*sl+m} offset:{KP+b+4+4*m}')
    pk(T+5, 12, 13); pk(T+6, 14, 15)
    a('s_mov_b32 exec_lo, 0xaaaaaaaa\ns_mov_b32 exec_hi, 0xaaaaaaaa')
    for sl in range(2):
        for r in range(4):
            off = 32 + 64*sl + 194*r
            a(f'ds_write_b16_d16_hi v{aK3w}, v{T+5+sl} offset:{off}')
            a(f'ds_write_b16 v{aK3w}, v{T+5+sl} offset:{768+off}')
    a('s_mov_b64 exec, -1')
    uwrite(0)
    a('s_waitcnt lgkmcnt(0)\ns_barrier')
    stamp(a, 4)
    accv = lambda t: vr(ACC+4*t, 4)
    started = set()
    def mf(t, A, B):
        a(f'{MF16} {accv(t)}, {vr(A,4)}, {vr(B,4)}, {accv(t) if t in started else "0"}'); started.add(t)
    def ldA(dst, dl):
        for hf in range(2):
            a(f'ds_read_b64_tr_b16 {vr(dst+2*hf,2)}, v{aKA} offset:{32+32*dl-8*hf}')
    def ldB(dst, jb, r):
        a(f'ds_read_b128 {vr(dst,4)}, v{aUB} offset:{512+512*jb-32*r}')
    def conv_group(jbs, pairs, extra=None):
        nB = len(jbs)
        def regs(buf):
            base = FR + 48*buf
            return (lambda x: base + 4*x), (lambda jb: base + 16 + 4*jbs.index(jb))
        def loads(r, buf):
            fa, fb = regs(buf)
            seq = []
            for k in range(max(4, nB)):
                if k < nB: seq.append(('B', jbs[k]))
                if k < 4: seq.append(('A', k))
            return [(lambda kind=kind, v=v: ldB(fb(v), v, r) if kind == 'B' else ldA(fa(v), r+16*v)) for kind, v in seq]
        for f in loads(1, 0): f()
        for n, r in enumerate(range(1, 16, 2)):
            fa, fb = regs(n & 1)
            nxt = loads(r+2, (n+1) & 1) if r < 15 else []
            todo = list(pairs)
            k = 0
            for (x, t) in todo:
                mf(t, fa(x), fb(t-x))
                if k < len(nxt): nxt[k](); k += 1
            for f in nxt[k:]: f()
            if extra and r == 1: extra(fb)
    def extra65(fb):
        ldA(GA, 65)
        for t in range(4, 8): mf(t, GA, fb(t-4))
    pairs_a = sorted([(x, t) for t in range(4) for x in range(t+1)], key=lambda p: max(p[0], p[1]-p[0]))
    conv_group([0,1,2,3], pairs_a, extra65)
    stamp(a, 5)
    for yb in range(4):
        for p in range(2):
            a(f'ds_read_b128 {vr(FR+8*yb+4*p,4)}, v{aUB} offset:{512+512*yb-48+16*p}')
    for dl in range(4):
        for s in range(2):
            a(f'ds_read_b64_tr_b16 {vr(FR+32+4*dl+2*s,2)}, v{aK3r} offset:{768*s+32*(dl+1)}')
    for yb in range(4):
        for p in range(2):
            a(f'{MF16} {vr(GA+8*yb+4*p,4)}, {vr(FR+8*yb+4*p,4)}, {vr(BAND+4*p,4)}, 0')
    def stage(h):
        for t in range(4):
            for k in range(2):
                a(f'v_cvt_pk_bf16_f32 v{W_+8+2*t+k}, v{ACC+16*h+4*t+2*k}, v{ACC+16*h+4*t+2*k+1}')
            a(f'ds_write_b64 v{aSw}, {vr(W_+8+2*t,2)} offset:{STB*h+512*t}')
    stage(0)
    for yb in range(4):
        for p in range(2):
            for k in range(2):
                a(f'v_cvt_pk_bf16_f32 v{FR+4*yb+2*p+k}, v{GA+8*yb+4*p+2*k}, v{GA+8*yb+4*p+2*k+1}')
    for yb in range(4):
        for t in range(4+yb, 8):
            mf(t, FR+4*yb, FR+32+4*(t-yb-4))
    uwrite(1)
    a('s_waitcnt lgkmcnt(0)\ns_barrier')
    stamp(a, 6)
    def flush(h):
        for q in range(2):
            for hc in range(2):
                a(f'ds_read_b64_tr_b16 {vr(GA+4*q+2*hc,2)}, v{aSr} offset:{STB*h+4*SP_*hc+128*q}')
        for q in range(2):
            a(f's_mov_b32 s{sT}, {(1024*h+64*q)*4096}')
            a(f'buffer_store_dwordx4 {vr(GA+4*q,4)}, v{aOut}, {srd(sOUT)}, s{sT} offen')
    flush(0)
    pairs_b = sorted([(x, t) for t in range(4, 8) for x in range(4)], key=lambda p: max(p[0], p[1]-p[0]-1))
    conv_group([1,2,3,4,5,6,7], pairs_b)
    stamp(a, 7)
    stage(1)
    a('s_waitcnt lgkmcnt(0)\ns_barrier')
    flush(1)
    stamp(a, 8)
    if OPT['stamps']:
        a('s_waitcnt vmcnt(0)')
        stamp(a, 9)
        stamps_out(a, 10, T+1, {0: 0, 1: 13, 4: 14, 9: 15})
    calib(a)
    a('s_endpgm')
    a.label('L_B_end')
    a.reset_counters()

HEADER = open('concat_heads__spectral_gfnet__ssm_conv_s4__prompt.s.ref').read().split('; Override launch')[0]

def build(**opt):
    OPT.update(opt)
    a = Asm()
    stamp(a, 0)
    if OPT.get('calib'): a('s_memrealtime s[96:97]')
    a('s_cmp_ge_u32 s2, 256\ns_cbranch_scc1 L_exit')
    a('s_cmp_ge_u32 s2, 128\ns_cbranch_scc1 L_B')
    gen_A(a)
    gen_B(a)
    a.label('L_exit')
    a('s_endpgm')
    a.pad()
    s = HEADER + f'; @launch grid=(256,1,1) block=(512,1,1) lds={LDS_BYTES}\n'
    s += f'''.amdgcn_target "amdgcn-amd-amdhsa--gfx950"
.text
.globl {KN}
.p2align 8
.type {KN},@function
{KN}:
''' + a.text() + f'''.section .rodata,"a"
.p2align 6
.amdhsa_kernel {KN}
  .amdhsa_next_free_vgpr 256
  .amdhsa_next_free_sgpr 102
  .amdhsa_accum_offset 256
  .amdhsa_group_segment_fixed_size 0
  .amdhsa_kernarg_size 120
  .amdhsa_user_sgpr_count 2
  .amdhsa_user_sgpr_kernarg_segment_ptr 1
  .amdhsa_system_sgpr_workgroup_id_x 1
.end_amdhsa_kernel
'''
    return s, a

if __name__ == '__main__':
    out = sys.argv[1] if len(sys.argv) > 1 else 'k.s'
    opt = {}
    for x in sys.argv[2:]:
        k, _, v = x.partition('=')
        opt[k] = int(v) if v else True
    s, a = build(**opt)
    open(out, 'w').write(s)
    print('instructions', sum(1 for x in a.ins if x.kind not in ('label','dir')), 'nops', a.nops)
```

```python
import re

TRANS = ('v_exp_f32','v_log_f32','v_rcp_f32','v_rsq_f32','v_sqrt_f32','v_sin_f32','v_cos_f32')
REG = re.compile(r'^-?(?:abs\()?([vs])(?:(\d+)|\[(\d+):(\d+)\])\)?$')

def regs_of(tok):
    tok = tok.strip()
    if tok in ('vcc',): return {'s106','s107'}
    if tok == 'vcc_lo': return {'s106'}
    if tok == 'vcc_hi': return {'s107'}
    if tok == 'exec': return {'exec'}
    if tok in ('exec_lo','exec_hi'): return {'exec'}
    if tok == 'm0': return {'m0'}
    m = REG.match(tok)
    if not m: return set()
    k = m.group(1)
    if m.group(2) is not None: return {k+m.group(2)}
    return {k+str(i) for i in range(int(m.group(3)), int(m.group(4))+1)}

class I:
    __slots__ = ('text','op','ops','defs','uses','kind','label','target','mods','srcc','npass','data')
    def __init__(self, text):
        self.text = text; self.label = None; self.target = None
        self.defs = set(); self.uses = set(); self.kind = 'other'; self.srcc = set(); self.npass = 0; self.data = set()
        t = text.split(';')[0].strip()
        if t.endswith(':'):
            self.kind = 'label'; self.label = t[:-1]; self.op = ''; return
        if t.startswith('.') or not t:
            self.kind = 'dir'; self.op = ''; return
        p = t.split(None, 1); op = self.op = p[0]
        rest = p[1] if len(p) > 1 else ''
        toks = [x.strip() for x in rest.split(',')] if rest else []
        mods = []
        if toks:
            last = toks[-1].split()
            toks[-1] = last[0]; mods = last[1:]
        clean = []
        for x in toks:
            if ' ' in x:
                y = x.split(); clean.append(y[0]); mods += y[1:]
            else: clean.append(x)
        toks = [x for x in clean if not re.match(r'^[01]\]?$', x) or True]
        self.ops = toks; self.mods = mods
        R = [regs_of(x) for x in toks]
        allr = lambda l: set().union(*l) if l else set()
        if op.startswith('v_mfma'):
            self.kind = 'mfma'; self.defs = R[0]; self.uses = R[1] | R[2] | R[3]; self.srcc = R[3]
            self.npass = 8 if '32x32x16' in op else 4
            self.data = R[1] | R[2]
        elif op.startswith('v_'):
            self.kind = 'valu'
            if op.startswith(('v_swap','v_permlane16_swap','v_permlane32_swap')):
                self.defs = R[0] | R[1]; self.uses = R[0] | R[1]
            elif op.startswith(('v_fmac','v_writelane')) or op.endswith('_dpp'):
                self.defs = R[0]; self.uses = allr(R)
            elif op.startswith('v_cmpx'):
                self.defs = R[0] | {'exec'}; self.uses = allr(R[1:])
            else:
                self.defs = R[0]; self.uses = allr(R[1:])
            self.uses |= {'exec'}
        elif op.startswith('ds_'):
            self.kind = 'ds'
            if op.startswith(('ds_read','ds_bpermute','ds_permute','ds_swizzle')):
                self.defs = R[0]; self.uses = allr(R[1:])
                if 'd16' in op: self.uses |= R[0]
            else: self.uses = allr(R)
            if 'addtid' in op: self.uses |= {'m0'}
        elif op.startswith(('buffer_','global_')):
            self.kind = 'vmem'
            if op in ('buffer_wbl2', 'buffer_inv'): pass
            elif 'lds' in mods or '_lds_' in op:
                self.uses = allr(R) | {'m0'}
            elif '_load' in op:
                self.defs = R[0]; self.uses = allr(R[1:])
                if 'd16' in op: self.uses |= R[0]
            else:
                self.uses = allr(R)
                if 'x4' in op or 'x3' in op:
                    self.data = R[0] if op.startswith('buffer_') else R[1]
                if 'atomic' in op and 'sc0' in mods: self.defs = R[0]
        elif op.startswith(('s_load','s_buffer_load','s_memtime','s_memrealtime')):
            self.kind = 'smem'; self.defs = R[0]; self.uses = allr(R[1:])
        elif op in ('s_waitcnt','s_nop','s_barrier','s_endpgm','s_sleep','s_setprio'):
            self.kind = op
        elif op.startswith(('s_branch','s_cbranch')):
            self.kind = 'branch'; self.target = toks[0]
            if 'vcc' in op: self.uses = {'s106','s107'}
        elif op.startswith('s_cmp') or op.startswith('s_bitcmp'):
            self.kind = 'salu'; self.uses = allr(R)
        elif op.startswith('s_'):
            self.kind = 'salu'; self.defs = R[0]; self.uses = allr(R[1:])
            if 'saveexec' in op: self.defs |= {'exec'}; self.uses |= {'exec'}
            if op.startswith(('s_addk','s_mulk','s_cmov','s_bitset')): self.uses |= R[0]
        else:
            raise ValueError('unknown op: ' + text)

class Asm:
    def __init__(self):
        self.ins = []
        self.vm = []
        self.lg = []
        self.nlab = 0
        self.depth = 0
        self.active = set()
    def raw(self, text): self.ins.append(I(text))
    def _need(self, q, regs):
        idx = -1
        for k, o in enumerate(q):
            if o['regs'] & regs: idx = k
        return idx
    def _def(self, o): return (not o['maybe']) or o['maybe'] in self.active
    def _count_after(self, q, idx):
        return sum(1 for o in q[idx+1:] if self._def(o))
    def __call__(self, text):
        for line in text.split('\n'):
            line = line.strip()
            if line: self.one(line)
    def one(self, text):
        i = I(text)
        if i.kind in ('label','dir'):
            self.ins.append(i); return
        touched = (i.defs | i.uses) - {'exec'}
        w = []
        k = self._need(self.vm, touched)
        if k >= 0:
            n = min(self._count_after(self.vm, k), 63)
            w.append(f'vmcnt({n})'); self._pop_vm(n)
        k = self._need(self.lg, touched)
        if k >= 0:
            if any(o['smem'] for o in self.lg): n = 0
            else: n = min(self._count_after(self.lg, k), 15)
            w.append(f'lgkmcnt({n})'); self._pop_lg(n)
        if w: self.ins.append(I('s_waitcnt ' + ' '.join(w)))
        if i.kind == 's_waitcnt':
            m = re.search(r'vmcnt\((\d+)\)', text)
            if m: self._pop_vm(int(m.group(1)))
            m = re.search(r'lgkmcnt\((\d+)\)', text)
            if m:
                n = int(m.group(1))
                if n == 0 or not any(o['smem'] for o in self.lg): self._pop_lg(n)
        self.ins.append(i)
        if i.kind == 'vmem': self.vm.append(dict(regs=set(i.defs), maybe=False, tag=None, id=len(self.ins)))
        elif i.kind == 'ds': self.lg.append(dict(regs=set(i.defs), maybe=False, smem=False, tag=None, id=len(self.ins)))
        elif i.kind == 'smem': self.lg.append(dict(regs=set(i.defs), maybe=False, smem=True, tag=None, id=len(self.ins)))
    def _pop(self, q, n):
        keep = []; c = 0
        for o in reversed(q):
            if c >= n: break
            keep.append(o)
            if self._def(o): c += 1
        return list(reversed(keep))
    def _pop_vm(self, n): self.vm = self._pop(self.vm, n)
    def _pop_lg(self, n): self.lg = self._pop(self.lg, n)
    def tag_vm(self, tag): self.vm[-1]['tag'] = tag
    def wait_vm_tag(self, tag):
        idx = max([k for k, o in enumerate(self.vm) if o['tag'] == tag], default=-1)
        if idx >= 0: self.one(f's_waitcnt vmcnt({min(self._count_after(self.vm, idx),63)})')
    def label(self, name): self.ins.append(I(name + ':'))
    def newlab(self, p='L'):
        self.nlab += 1; return f'{p}_{self.nlab}'
    def cond(self, br, group=True):
        a = self
        class C:
            def __enter__(s):
                s.lab = a.newlab('Lskip'); a.one(f'{br} {s.lab}')
                s.vm = [dict(o) for o in a.vm]; s.lg = [dict(o) for o in a.lg]
                s.vid = len(a.ins)
                for o in a.vm + a.lg: o['pre'] = s.lab
                if group is not True: a.active.add(group)
                return s
            def __exit__(s, *e):
                if e[0] is not None: return False
                nv = [dict(o, maybe=(o['maybe'] or group)) for o in a.vm if o.get('pre') != s.lab]
                nl = [dict(o, maybe=(o['maybe'] or group)) for o in a.lg if o.get('pre') != s.lab]
                if group is not True:
                    a.active.discard(group)
                    liveids = {o.get('id') for o in a.vm + a.lg}
                    s.vm = [o for o in s.vm if o['maybe'] != group or o.get('id') in liveids]
                    s.lg = [o for o in s.lg if o['maybe'] != group or o.get('id') in liveids]
                a.vm = s.vm + nv; a.lg = s.lg + nl
                a.label(s.lab)
        return C()
    def ifelse(self, br, f_then, f_else):
        le = self.newlab('Lelse'); ld = self.newlab('Lend')
        self.one(f'{br} {le}')
        v0 = [dict(o) for o in self.vm]; l0 = [dict(o) for o in self.lg]
        for o in self.vm + self.lg: o['pre'] = le
        f_then()
        n1v = [dict(o, maybe=True) for o in self.vm if o.get('pre') != le]; n1l = [dict(o, maybe=True) for o in self.lg if o.get('pre') != le]
        self.one(f's_branch {ld}')
        self.label(le)
        self.vm = [dict(o, pre=le) for o in v0]; self.lg = [dict(o, pre=le) for o in l0]
        f_else()
        n2v = [dict(o, maybe=True) for o in self.vm if o.get('pre') != le]; n2l = [dict(o, maybe=True) for o in self.lg if o.get('pre') != le]
        self.vm = v0 + n1v + n2v; self.lg = l0 + n1l + n2l
        self.label(ld)
    def reset_counters(self): self.vm = []; self.lg = []

    @staticmethod
    def required(p, c):
        r = 0
        V = lambda s: {x for x in s if x[0] == 'v'}
        S = lambda s: {x for x in s if x[0] == 's'}
        if p.kind == 'valu':
            pv = V(p.defs); ps = S(p.defs)
            if c.kind == 'mfma' and pv & c.uses: r = max(r, 2)
            if c.kind == 'valu':
                if p.op in TRANS and pv & c.uses: r = max(r, 1)
                if ps & c.uses: r = max(r, 4 if c.op.startswith(('v_readlane','v_writelane')) else 2)
                if c.op.startswith(('v_readlane','v_readfirstlane')) and pv & c.uses: r = max(r, 1)
                if c.op.startswith('v_permlane') and pv & c.uses: r = max(r, 2)
                if ('dpp' in c.op or any(m.startswith(('row_','wave_','quad_perm')) for m in c.mods)) and pv & c.uses: r = max(r, 2)
                if any(m.startswith(('op_sel','dst_sel')) for m in p.mods) and pv & (c.uses | c.defs): r = max(r, 1)
            if c.kind == 'vmem' and ps & c.uses: r = max(r, 5)
            if c.kind in ('salu','smem','branch') and ps & c.uses: r = max(r, 1)
            if 'exec' in p.defs:
                if c.kind == 'mfma': r = max(r, 4)
                if c.kind == 'valu' and c.op.startswith(('v_readlane','v_readfirstlane','v_writelane','v_permlane')): r = max(r, 4)
        if p.kind == 'mfma':
            big = p.npass == 8
            if c.kind == 'mfma':
                if p.defs & c.data: r = max(r, 12 if big else 8)
                if p.defs & c.srcc and not (p.defs == c.srcc and p.op == c.op): r = max(r, 10 if big else 6)
                if p.defs & c.defs and not (p.defs == c.srcc and p.op == c.op): r = max(r, 10 if big else 6)
            elif c.kind in ('valu','ds','vmem'):
                if p.defs & (c.uses | c.defs): r = max(r, 12 if big else 8)
                if c.kind == 'valu' and p.srcc & c.defs: r = max(r, 7 if big else 3)
        if p.kind == 'vmem' and p.data and (p.data & c.defs): r = max(r, 2)
        if p.kind == 'salu' and 'm0' in p.defs and 'm0' in c.uses and c.kind in ('ds','vmem'): r = max(r, 1)
        return r
    def pad(self):
        ins = self.ins
        labs = {x.label: k for k, x in enumerate(ins) if x.kind == 'label'}
        jumps = {}
        for k, x in enumerate(ins):
            if x.kind == 'branch' and x.target in labs: jumps.setdefault(labs[x.target], []).append(k)
        def states(x):
            if x.kind in ('label','dir'): return 0
            if x.kind == 's_nop': return int(x.ops[0]) + 1
            return 1
        extra = [0]*len(ins)
        changed = True
        while changed:
            changed = False
            for k, c in enumerate(ins):
                if c.kind not in ('valu','mfma','ds','vmem','salu','smem','branch'): continue
                need = 0
                stack = [(k, extra[k])]; seen = {}
                while stack:
                    pos, dist = stack.pop()
                    preds = []
                    if pos > 0 and not (ins[pos-1].op in ('s_branch','s_endpgm')): preds.append(pos-1)
                    if ins[pos].kind == 'label': preds += jumps.get(pos, [])
                    for q in preds:
                        p = ins[q]
                        if p.kind in ('valu','mfma','vmem','salu'):
                            need = max(need, self.required(p, c) - dist)
                        nd = dist + states(p) + extra[q]
                        if nd < 12 and seen.get(q, 99) > nd:
                            seen[q] = nd; stack.append((q, nd))
                if need > 0:
                    extra[k] += need; changed = True
        out = []
        for k, c in enumerate(ins):
            if extra[k]: out.append(I(f's_nop {extra[k]-1}'))
            out.append(c)
        self.ins = out
        self.nops = sum(extra)
    def text(self):
        o = []
        for x in self.ins:
            o.append(x.text if x.kind == 'label' else '  ' + x.text)
        return '\n'.join(o) + '\n'
```

```python
import sys, struct, math, itertools
from asmlib import Asm

KN = 'concat_heads__spectral_gfnet__ssm_conv_s4__prompt_kernel'
def fh(x): return '0x%08x' % struct.unpack('<I', struct.pack('<f', x))[0]
def vr(b, n): return f'v[{b}:{b+n-1}]'

OPT = dict(stamps=False)

Z1 = 0; Z2 = 4 << 20; FL1 = 8 << 20; FL2 = FL1 + 65536; GEN = FL1 + 131072; STAMP = 16 << 20
FLS = 256
WS_SIZE = 268435456
LDS_BYTES = 154688

MF16 = 'v_mfma_f32_16x16x32_bf16'
MF32 = 'v_mfma_f32_32x32x16_bf16'

sW = 3
sX, sWR, sWI, sOUT, sWS = 8, 12, 16, 20, 24
def srd(b): return f's[{b}:{b+3}]'
sT = 28
sNONCE = 40; sA = 41; sB = 42; sBP = 43; sDQ = 44; sSWZ = 45; sSPEC = 46; sM = 48
sCNT = 52; sMSK = 54
sWO = 56; sKB = 58; s2M = 59
sST = 60

NAMES = {'A': [], 'B': []}
ROLE = ['A']
def stamp(a, k, lvl=0):
    if not OPT['stamps']: return
    if lvl and OPT.get('detail') != lvl: return
    if not lvl and OPT.get('detail') and k not in (0, 'end'): return
    if k == 0: i = 0
    else:
        NAMES[ROLE[0]].append(str(k)); i = len(NAMES[ROLE[0]])
    assert i < 16
    a(f'{"s_memtime" if OPT.get("cyc") else "s_memrealtime"} s[{sST+2*i}:{sST+2*i+1}]')

def stamps_out(a, n, vt, dbgmap=None):
    if not OPT['stamps']: return
    if OPT.get('dbg'):
        a('s_load_dwordx2 s[28:29], s[0:1], 104\ns_mov_b32 s30, 256\ns_mov_b32 s31, 0x20000\ns_waitcnt lgkmcnt(0)')
        a(f's_not_b32 s{sST}, s{sST}')
        a('s_mov_b64 exec, 1')
        a(f's_cmp_lg_u32 s{sW}, 0')
        with a.cond('s_cbranch_scc1'):
            for k, slot in dbgmap.items():
                a(f'v_mov_b32 v{vt+1}, s{sST+2*k}')
                a(f'buffer_atomic_umax v{vt+1}, off, s[28:31], 0 offset:{4*slot}')
        a('s_mov_b64 exec, -1')
        return
    a('s_waitcnt lgkmcnt(0)')
    a(f's_lshl_b32 s{sT}, s2, 3\ns_add_u32 s{sT}, s{sT}, s{sW}\ns_lshl_b32 s{sT}, s{sT}, 6\ns_add_u32 s{sT}, s{sT}, {STAMP}')
    a(f'v_mov_b32 v{vt}, s{sT}')
    a('s_mov_b64 exec, 1')
    for k in range(n):
        a(f'v_mov_b32 v{vt+1}, s{sST+2*k}')
        a(f'buffer_store_dword v{vt+1}, v{vt}, {srd(sWS)}, 0 offen offset:{4*k}')
    a('s_mov_b64 exec, -1')

def calib(a):
    n = OPT.get('calib')
    if not n: return
    lab = a.newlab('Lcal')
    a('s_waitcnt vmcnt(0) lgkmcnt(0)')
    a.label(lab)
    a(f'''s_memrealtime s[30:31]
    s_waitcnt lgkmcnt(0)
    s_sub_u32 s30, s30, s96
    s_cmp_lt_u32 s30, {n}
    s_cbranch_scc1 {lab}''')

def trig4(a, args, tmp):
    for i, r in enumerate(args):
        a(f'v_cos_f32 v{tmp+2*i}, v{r}')
        a(f'v_sin_f32 v{tmp+2*i+1}, v{r}')

def args4(a, dst, vx, vbase, step):
    for m in (3, 2, 1):
        a(f'v_fmamk_f32 v{dst+m}, v{vx}, {fh(step*m)}, v{vbase}')
    if vbase != dst: a(f'v_mov_b32 v{dst}, v{vbase}')

def matrix(a, re, im, args, tmp):
    trig4(a, args, tmp)
    for m in range(len(args)):
        a(f'v_cvt_pk_bf16_f32 v{re+m}, v{tmp+2*m}, v{tmp+2*m+1}')
        a(f'v_cvt_pk_bf16_f32 v{im+m}, -v{tmp+2*m+1}, v{tmp+2*m}')

DG = 1.00282
sSEL = 47
def pack(a, d, lo, hi):
    a(f'v_perm_b32 v{d}, v{hi}, v{lo}, s{sSEL}')

def scale(a, base, n, g):
    for k in range(n): a(f'v_mul_f32 v{base+k}, {fh(g)}, v{base+k}')

def twiddle(a, dst, re, im, tw, tmp):
    for r in range(4):
        a(f'v_mul_f32 v{tmp+2*r}, v{re+r}, v{tw+2*r}')
        a(f'v_mul_f32 v{tmp+2*r+1}, v{im+r}, v{tw+2*r}')
    for r in range(4):
        a(f'v_fmac_f32 v{tmp+2*r}, v{im+r}, v{tw+2*r+1}')
        a(f'v_fma_f32 v{tmp+2*r+1}, -v{re+r}, v{tw+2*r+1}, v{tmp+2*r+1}')
    for r in range(4):
        pack(a, dst+r, tmp+2*r, tmp+2*r+1)

def poll(a, base, va, vf):
    lab = a.newlab('Lpoll'); done = a.newlab('Lpolldone')
    a(f's_mov_b32 s{sCNT}, 100000')
    a(f's_mov_b32 s{sT}, {base}')
    a('s_mov_b64 exec, 0xffff')
    a.label(lab)
    a(f'buffer_load_dword v{vf}, v{va}, {srd(sWS)}, s{sT} offen sc1')
    a('s_waitcnt vmcnt(0)')
    a(f'v_cmp_ne_u32 vcc, s{sNONCE}, v{vf}')
    a('s_and_b64 exec, exec, vcc')
    a(f's_cbranch_scc0 {done}')
    a(f's_sub_u32 s{sCNT}, s{sCNT}, 1')
    a(f's_cmp_lg_u32 s{sCNT}, 0')
    a(f's_cbranch_scc1 {lab}')
    a.label(done)
    a('s_mov_b64 exec, -1')

def prefetch_code(a, start, end, vt):
    a(f's_getpc_b64 s[{sT}:{sT+1}]')
    lab = a.newlab('Lpc'); a.label(lab)
    a(f'v_lshlrev_b32 v{vt}, 6, v0')
    a(f'v_min_u32 v{vt}, ({end}-{lab}-4), v{vt}')
    a(f'global_load_dword v{vt+1}, v{vt}, s[{sT}:{sT+1}]')

def gen_A(a):
    vJ, vG, vL = 1, 2, 3
    T = 4
    L, X, ACC = 16, 32, 48
    C1 = 80; MR = C1; MD1 = C1+8; TW = C1+16; MD2 = C1+32
    C2 = 136; M1 = C2; T1 = C2+8; M8 = C2+16; T1i = C2+24; M1i = C2+32
    CO = 176
    AD = 224
    aX, aE1w, aE1r, aZ, aFl, aNon, aDma, aI2, aWw, aWr, aO2w, aO2r, aZ2, aW0, aW1 = \
        AD, AD+1, AD+2, AD+3, AD+4, AD+5, AD+6, AD+8, AD+12, AD+13, AD+15, AD+16, AD+17, AD+18, AD+19
    aSp = AD+20
    fJ, fG = AD+24, AD+25
    TT = AD+26
    E1 = 0; I2 = 36864; O2 = I2 + 32768 + 64; WSL = O2 + 34816; MIR = WSL + 33280; SPL = MIR + 1024; NON = SPL + 2048; E3 = 0
    assert NON + 16 <= LDS_BYTES
    acc = lambda tile, part: ACC + 8*tile + 4*part

    a.label('L_A')
    prefetch_code(a, 'L_A', 'L_A_end', TT)
    a(f'''s_load_dwordx2 s[{sX}:{sX+1}], s[0:1], 0
    s_load_dwordx2 s[{sWS}:{sWS+1}], s[0:1], 112
    s_load_dwordx2 s[{sWR}:{sWR+1}], s[0:1], 8
    s_load_dwordx2 s[{sWI}:{sWI+1}], s[0:1], 16
    s_load_dwordx2 s[{sOUT}:{sOUT+1}], s[0:1], 96
    s_mov_b32 s{sSEL}, 0x07060302
    s_mov_b32 s{sX+2}, 4194304
    s_mov_b32 s{sX+3}, 0x20000
    s_mov_b32 s{sWS+2}, {WS_SIZE}
    s_mov_b32 s{sWS+3}, 0x20000
    s_mov_b32 s{sWR+2}, 2101248
    s_mov_b32 s{sWR+3}, 0x20000
    s_mov_b32 s{sWI+2}, 2101248
    s_mov_b32 s{sWI+3}, 0x20000
    s_mov_b32 s{sOUT+2}, 8388608
    s_mov_b32 s{sOUT+3}, 0x20000
    v_lshrrev_b32 v{T}, 6, v0
    v_and_b32 v{vL}, 63, v0
    v_readfirstlane_b32 s{sW}, v{T}
    v_and_b32 v{vJ}, 15, v0
    v_bfe_u32 v{vG}, v0, 4, 2
    s_lshl_b32 s{sM}, s2, 11
    s_add_u32 s{sM+1}, s{sM}, 262144
    s_add_u32 s{sM+2}, s{sM}, 524288
    s_add_u32 s{sM+3}, s{sM}, 786432
    v_lshlrev_b32 v{aX}, 20, v{vG}
    v_lshl_or_b32 v{aX}, v{vJ}, 3, v{aX}
    v_lshl_or_b32 v{aX}, v{T}, 8, v{aX}''')
    xsrc = {}
    for m in range(4):
        for nb in range(2):
            r = L + 4*m + 2*nb
            xsrc[m, nb] = r
            a(f'buffer_load_dwordx2 {vr(r,2)}, v{aX}, {srd(sX)}, s{sM+m} offen offset:{128*nb}')
    stamp(a, 1)
    stamp(a, 'xiss', 1)
    if OPT.get('touch'):
        a(f's_cmp_lg_u32 s{sW}, 7')
        with a.cond('s_cbranch_scc1'):
            a(f'''v_lshlrev_b32 v{TT}, 17, v{vL}
            buffer_load_dword v{TT+5}, v{TT}, {srd(sWS)}, 0 offen sc1
            buffer_load_dword v{TT+5}, v{TT}, {srd(sOUT)}, 0 offen sc1''')
    a(f'''s_and_b32 s{sA}, s2, 7
    s_lshr_b32 s{sB}, s2, 3
    s_lshl_b32 s{sBP}, s{sA}, 12
    s_mov_b32 s{sDQ}, 2048
    s_mov_b32 s{sSPEC}, 0
    s_cmp_lg_u32 s{sA}, 0''')
    with a.cond('s_cbranch_scc1'):
        a(f'''s_and_b32 s{sA}, s{sB}, 8
        s_lshl_b32 s{sBP}, s{sA}, 8
        s_and_b32 s{sB}, s{sB}, 7
        s_mov_b32 s{sDQ}, 1024
        s_mov_b32 s{sSPEC}, 1''')
    a(f'''s_lshl_b32 s{sT}, s{sB}, 7
    s_add_u32 s{sBP}, s{sBP}, s{sT}''')
    a(f'v_cvt_f32_u32 v{fJ}, v{vJ}\nv_cvt_f32_u32 v{fG}, v{vG}')
    a(f'''v_lshrrev_b32 v{T}, 1, v{vJ}
    v_cmp_eq_u32 vcc, 1, v{vJ}
    v_cndmask_b32 v{T}, v{T}, 8, vcc
    v_cvt_f32_u32 v{T}, v{T}
    v_and_b32 v{T+1}, 1, v{vJ}
    v_lshlrev_b32 v{T+1}, 31, v{T+1}
    v_cndmask_b32 v{TT+2}, v{T+1}, 0, vcc
    v_mul_f32 v{T+1}, 0x3e800000, v{fG}
    v_mul_f32 v{X}, v{T}, v{T+1}''')
    args4(a, X, T, X, 1/16)
    matrix(a, MR, MR+4, [X+m for m in range(4)], ACC)
    for m in range(8): a(f'v_xor_b32 v{MR+m}, v{TT+2}, v{MR+m}')
    a(f'v_mul_f32 v{X}, v{fJ}, v{T+1}')
    args4(a, X, fJ, X, 1/16)
    matrix(a, MD1, MD1+4, [X+m for m in range(4)], ACC)
    a(f'v_mul_f32 v{T+2}, {fh(1/64)}, v{fG}\nv_mul_f32 v{X}, v{fJ}, v{T+2}')
    a(f'v_fmamk_f32 v{X+4}, v{fJ}, {fh(1/512)}, v{X}')
    args4(a, X, fJ, X, 2/512); args4(a, X+4, fJ, X+4, 2/512)
    trig4(a, [X+m for m in range(8)], TW)
    scale(a, TW, 16, DG*DG)
    a(f'v_mul_f32 v{X}, v{fJ}, v{T+1}')
    a(f'v_fmamk_f32 v{X+4}, v{fJ}, {fh(1/32)}, v{X}')
    args4(a, X, fJ, X, 2/32); args4(a, X+4, fJ, X+4, 2/32)
    matrix(a, MD2, MD2+4, [X+m for m in range(4)], ACC)
    matrix(a, MD2+8, MD2+12, [X+4+m for m in range(4)], ACC+8)
    for m in range(8): a(f'v_xor_b32 v{MD2+16+m}, 0x80008000, v{MD2+8+m}')
    a(f'''v_mul_u32_u24 v{T}, 72, v{vJ}
    s_lshl_b32 s{sT}, s{sW}, 3
    v_mul_u32_u24 v{aE1w}, 9216, v{vG}
    v_add3_u32 v{aE1w}, v{aE1w}, v{T}, s{sT}
    s_mul_i32 s{sT}, s{sW}, 4608
    v_lshl_add_u32 v{aE1r}, v{vG}, 4, v{T}
    v_add_u32 v{aE1r}, s{sT}, v{aE1r}
    s_lshl_b32 s{sT}, s{sW}, 12
    s_lshl_b32 s{sT+1}, s2, 15
    s_add_u32 s{sT}, s{sT}, s{sT+1}
    v_lshl_add_u32 v{aZ}, v{vL}, 4, s{sT}''')
    aS1, aBp, aSx = TT+3, TT+4, TT+5
    a(f'''v_sub_u32 v{T}, 16, v{vJ}
    v_and_b32 v{T}, 15, v{T}
    v_lshlrev_b32 v{T}, 4, v{T}
    v_sub_u32 v{T+1}, 3, v{vG}
    v_lshl_add_u32 v{T}, v{T+1}, 8, v{T}
    v_add_u32 v{aS1}, s{sT+1}, v{T}
    v_add_u32 v{T}, 16, v{vL}
    v_and_b32 v{T}, 63, v{T}
    v_lshlrev_b32 v{aBp}, 2, v{T}''')
    for r in range(4): a(f'v_mov_b32 v{aSp+r}, 0')
    SC1 = OPT.get('z1scat', 1)
    if SC1:
        a(f'''s_lshl_b32 s{sT}, s2, 8
        s_lshl_b32 s{sT+1}, s{sW}, 15
        s_add_u32 s{sT+1}, s{sT+1}, s{sT}
        v_lshrrev_b32 v{T}, 3, v{vL}
        v_and_b32 v{T+1}, 7, v{vL}
        v_lshlrev_b32 v{T+1}, 4, v{T+1}
        v_lshl_add_u32 v{T}, v{T}, 18, v{T+1}
        v_add_u32 v{aZ}, s{sT+1}, v{T}
        v_sub_u32 v{T}, 16, v{vJ}
        v_and_b32 v{T+1}, 7, v{T}
        v_bfe_u32 v{T}, v{T}, 3, 1
        v_sub_u32 v{T+2}, 3, v{vG}
        v_lshl_add_u32 v{T}, v{T+2}, 1, v{T}
        v_lshlrev_b32 v{T+1}, 4, v{T+1}
        v_lshl_add_u32 v{T}, v{T}, 18, v{T+1}
        v_add_u32 v{aS1}, s{sT}, v{T}
        s_mov_b32 s{s2M}, 0x200000''')
    WL = CO+32
    a(f'''v_lshrrev_b32 v{T}, 2, v0
    v_lshl_add_u32 v{T}, v{T}, 4, s{sA}
    v_sub_u32 v{T+1}, 0, v{T}
    v_and_b32 v{T+1}, 0x7ff, v{T+1}
    v_and_b32 v{T+2}, 3, v0
    v_lshlrev_b32 v{T+2}, 5, v{T+2}
    v_sub_u32 v{T+3}, 96, v{T+2}
    s_movk_i32 s{sT}, 1026
    v_mad_u32_u24 v{aW0}, v{T}, s{sT}, v{T+2}
    v_mad_u32_u24 v{aW1}, v{T+1}, s{sT}, v{T+3}
    s_lshr_b32 s{sKB}, s{sB}, 1
    s_lshl_b32 s{sKB}, s{sKB}, 3
    s_and_b32 s{sT}, s{sB}, 1
    s_add_u32 s{sKB}, s{sKB}, s{sT}
    s_lshl_b32 s{sKB}, s{sKB}, 3
    s_lshl_b32 s{sWO}, s{sKB}, 1
    s_sub_u32 s{sWO+1}, {1010-96}, s{sWO}''')
    SX = CO+30
    a(f'''v_and_b32 v{T+2}, 3, v0
    v_mul_u32_u24 v{T}, 1026, v{T}
    v_mul_u32_u24 v{T+1}, 1026, v{T+1}
    v_lshlrev_b32 v{T+3}, 9, v{T+2}
    v_sub_u32 v{T+3}, 1536, v{T+3}
    v_add_u32 v{T}, v{T}, v{T+3}
    v_cmp_eq_u32 vcc, 0, v{T+2}
    s_add_u32 s{sT}, s{sSPEC}, 2
    s_cmp_eq_u32 s{sB}, 0
    s_cselect_b32 s{sT}, s{sT}, 0
    v_cndmask_b32 v{T}, v{T}, v{T+1}, vcc
    v_cmp_gt_u32 vcc, s{sT}, v{T+2}
    v_mov_b32 v{T+1}, 0x7ffffff0
    v_cndmask_b32 v{aSx}, v{T+1}, v{T}, vcc''')
    WPOS = [int(c) for c in str(OPT.get("wpos", 1266)).zfill(5)]
    def wat(p):
        for q in range(4):
            if WPOS[q] == p:
                a(f'buffer_load_dwordx4 {vr(WL+4*q,4)}, v{(aW0,aW1)[q>>1]}, {srd((sWR,sWI)[q&1])}, s{sWO+(q>>1)} offen')
        if WPOS[4] == p:
            a(f'buffer_load_ushort v{SX}, v{aSx}, {srd(sWR)}, 0 offen')
            a(f'buffer_load_ushort v{SX+1}, v{aSx}, {srd(sWI)}, 0 offen')
    wat(0)
    stamp(a, 'const', 1)
    xt = lambda nb, tp: X + 4*(2*tp + nb)
    for tp in range(2):
        for nb in range(2):
            for h in range(2):
                a(f'v_pk_mov_b32 {vr(xt(nb,tp)+2*h,2)}, {vr(xsrc[2*h,nb],2)}, {vr(xsrc[2*h+1,nb],2)} op_sel:[{tp},{tp}]')
    stamp(a, 2)
    stamp(a, 'xland', 1)
    a(f's_cmp_lg_u32 s{sW}, 0')
    with a.cond('s_cbranch_scc1'):
        a(f'''s_mov_b32 s{sT}, {GEN}
        s_mov_b64 exec, 1
        buffer_load_dword v{aNon}, off, {srd(sWS)}, s{sT} sc1
        s_mov_b64 exec, -1''')
    wat(1)
    for tp in range(2):
        for nb in range(2):
            for part in range(2):
                a(f'{MF16} {vr(acc(2*tp+nb,part),4)}, {vr(MR+4*part,4)}, {vr(xt(nb,tp),4)}, 0')
    for tp in range(2):
        for r in range(4):
            for nb in range(2):
                a(f'v_cvt_pk_bf16_f32 v{L+8*tp+2*r+nb}, v{acc(2*tp+nb,0)+r}, v{acc(2*tp+nb,1)+r}')
            a(f'ds_write_b64 v{aE1w}, {vr(L+8*tp+2*r,2)} offset:{E1+2304*r+1152*tp}')
    wat(2)
    stamp(a, 'wr', 1)
    a('s_waitcnt lgkmcnt(0)')
    stamp(a, 'wrdone', 1)
    a('s_barrier')
    stamp(a, 'bar', 1)
    for wh in range(2):
        for t in range(2):
            for h in range(2):
                a(f'ds_read_b64 {vr(X+8*wh+4*t+2*h,2)}, v{aE1r} offset:{E1+2304*wh+1152*t+8*h}')
    for tile in range(4):
        for part in range(2):
            a(f'{MF16} {vr(acc(tile,part),4)}, {vr(X+4*tile,4)}, {vr(MD1+4*part,4)}, 0')
    wat(3)
    stamp(a, 'd1iss', 1)
    for tile in range(4):
        twiddle(a, X+4*tile, acc(tile,0), acc(tile,1), TW+8*(tile&1), T)
    stamp(a, 'tw', 1)
    wat(4)
    for wh in range(2):
        for N in range(2):
            for part in range(2):
                a(f'{MF16} {vr(acc(2*wh+N,part),4)}, {vr(MD2+4*part,4)}, {vr(X+8*wh,4)}, 0')
        for N in range(2):
            for part in range(2):
                a(f'{MF16} {vr(acc(2*wh+N,part),4)}, {vr(MD2+8+8*N+4*part,4)}, {vr(X+8*wh+4,4)}, {vr(acc(2*wh+N,part),4)}')
    STF = {0: 'sc1', 1: 'sc0 sc1', 2: 'sc1 nt'}[OPT.get('stf', 0)]
    def z1_store(wh, N, w0=False):
        for r in range(4): pack(a, L+8*wh+4*N+r, acc(2*wh+N,0)+r, acc(2*wh+N,1)+r)
        so, off = '0', 2048*wh+1024*N
        if SC1:
            so, off = (f's{s2M}' if N else '0'), 128*wh
            if w0: so, off = f's{s2M}', 0
        a(f'buffer_store_dwordx4 {vr(L+8*wh+4*N,4)}, v{aZ}, {srd(sWS)}, {so} offen offset:{off} {STF}')
        a.tag_vm('z1')
    z1_store(0, 0)
    stamp(a, 'st0', 1)
    def norm1():
        z1_store(0, 1); z1_store(1, 0); z1_store(1, 1)
    def spec1():
        a(f'v_cmp_eq_u32 vcc, 0, v{vJ}')
        for wh in range(2):
            R = T + 5*wh
            for r in range(4):
                pack(a, R+r, acc(2*wh+1,0)+r, acc(2*wh+1,1)+r)
                a(f'v_xor_b32 v{R+r}, 0x80000000, v{R+r}')
                if r == 0: a(f'ds_bpermute_b32 v{R+4}, v{aBp}, v{R}')
            if wh == 0: z1_store(1, 0, True)
        for wh in range(2):
            R = T + 5*wh; O = L+8*wh+4
            for k in (3, 2, 1, 0):
                a(f'v_cndmask_b32 v{O+k}, v{R+3-k}, v{R+4-k}, vcc')
            so, off = '0', 2048*wh+1024
            if SC1: so, off = (f's{s2M}' if wh else '0'), 128
            a(f'buffer_store_dwordx4 {vr(O,4)}, v{aS1}, {srd(sWS)}, {so} offen offset:{off} {STF}')
            a.tag_vm('z1')
    a(f's_cmp_eq_u32 s{sW}, {99 if OPT.get("nospec") else 0}')
    a.ifelse('s_cbranch_scc1', norm1, spec1)
    stamp(a, 3)
    stamp(a, 'st3', 1)
    wat(5)
    if 6 in WPOS: a('s_barrier')
    wat(6)
    stamp(a, 'wiss', 1)
    a(f's_cmp_lg_u32 s{sW}, 0')
    with a.cond('s_cbranch_scc1'):
        a(f'''v_add_u32 v{aNon}, 0x9e3779b9, v{aNon}
        v_mov_b32 v{T}, {NON}
        s_mov_b64 exec, 1
        ds_write_b32 v{T}, v{aNon}
        s_mov_b64 exec, -1
        s_mul_i32 s{sT}, s2, {FLS}
        s_add_u32 s{sT}, s{sT}, {FL1}
        s_waitcnt lgkmcnt(0)''')
    a.wait_vm_tag('z1')
    stamp(a, 'drain', 1)
    a('s_barrier')
    a(f's_cmp_lg_u32 s{sW}, 0')
    with a.cond('s_cbranch_scc1'):
        a(f'''s_mov_b64 exec, 1
        buffer_store_dword v{aNon}, off, {srd(sWS)}, s{sT} sc1
        s_mov_b64 exec, -1''')
    stamp(a, 4)
    stamp(a, 'bar2', 1)
    wat(7)
    a(f'v_mov_b32 v{aNon}, {NON}\nds_read_b32 v{aNon}, v{aNon}')
    SP = C1+16
    fK, fS, fF = T, T+1, T+2
    AR = L
    a(f'''v_cvt_f32_u32 v{fF}, s{sA}
    v_mul_f32 v{fF}, {fh(1/16)}, v{fF}
    v_add_f32 v{fK}, v{fJ}, v{fF}
    v_and_b32 v{fS}, 1, v{vG}
    v_lshlrev_b32 v{fS}, 2, v{fS}
    v_cvt_f32_u32 v{fS}, v{fS}
    v_mul_f32 v{T+3}, 0x3e800000, v{fG}
    v_mul_f32 v{AR}, v{fK}, v{T+3}''')
    args4(a, AR, fK, AR, 1/16)
    matrix(a, M1, M1+4, [AR+m for m in range(4)], ACC)
    a(f'v_mul_f32 v{T+3}, {fh(1/128)}, v{fS}\nv_mul_f32 v{AR}, v{fK}, v{T+3}')
    args4(a, AR, fK, AR, 1/128)
    trig4(a, [AR+m for m in range(4)], T1)
    scale(a, T1, 8, DG)
    a(f'''v_and_b32 v{T+4}, 7, v{vJ}
    v_cvt_f32_u32 v{T+4}, v{T+4}
    v_mul_f32 v{T+3}, 0x3e000000, v{fS}
    v_mul_f32 v{AR}, v{T+4}, v{T+3}''')
    args4(a, AR, T+4, AR, 1/8)
    matrix(a, M8, M8+4, [AR+m for m in range(4)], ACC)
    a(f'''v_lshrrev_b32 v{T+5}, 3, v{vJ}
    v_lshrrev_b32 v{T+6}, 1, v{vG}
    v_cmp_eq_u32 vcc, v{T+5}, v{T+6}''')
    for m in range(8): a(f'v_cndmask_b32 v{M8+m}, 0, v{M8+m}, vcc')
    a(f'''v_fmamk_f32 v{T+3}, v{fG}, 4.0, v{fF}
    v_mul_f32 v{T+7}, {fh(1/128)}, v{T+3}
    v_mul_f32 v{AR}, v{T+4}, v{T+7}'''.replace('4.0', fh(4.0)))
    args4(a, AR, T+4, AR, 1/128)
    trig4(a, [AR+m for m in range(4)], T1i)
    scale(a, T1i, 8, DG*DG)
    a(f'v_mul_f32 v{T+7}, {fh(1/16)}, v{T+3}\nv_mul_f32 v{AR}, v{fJ}, v{T+7}')
    args4(a, AR, fJ, AR, 1/16)
    matrix(a, M1i, M1i+4, [AR+m for m in range(4)], ACC)
    a(f'''v_bfe_u32 v{T}, v{vL}, 3, 1
    v_mul_u32_u24 v{T}, s{sDQ}, v{T}
    v_lshl_add_u32 v{T}, v{vG}, 15, v{T}
    v_add_u32 v{T}, s{sBP}, v{T}
    v_and_b32 v{T+1}, 7, v{vL}
    v_lshl_add_u32 v{aZ2}, v{T+1}, 4, v{T}''')
    if SC1: a(f'v_and_b32 v{T}, 56, v{vL}\nv_lshlrev_b32 v{T}, 4, v{T}')
    a(f'''v_xor_b32 v{T+1}, v{T+1}, v{vG}
    v_lshl_add_u32 v{aDma}, v{T+1}, 4, v{T}
    v_xor_b32 v{T+1}, 4, v{T+1}
    v_lshl_add_u32 v{aDma+1}, v{T+1}, 4, v{T}''')
    a(f'''v_and_b32 v{T}, 7, v{vJ}
    v_xor_b32 v{T+1}, s{sW}, v{T}
    v_lshlrev_b32 v{T+1}, 4, v{T+1}
    v_lshl_or_b32 v{T+1}, v{T}, 8, v{T+1}
    v_lshl_or_b32 v{T+1}, v{T+5}, 3, v{T+1}
    v_mul_u32_u24 v{T+2}, 8196, v{vG}
    v_add_u32 v{T+1}, v{T+1}, v{T+2}
    v_add_u32 v{aI2}, {I2}, v{T+1}
    v_add_u32 v{aI2+1}, {I2+128}, v{T+1}
    v_add_u32 v{aI2+2}, {I2+4}, v{T+1}
    v_add_u32 v{aI2+3}, {I2+132}, v{T+1}''')
    a(f'''s_lshr_b32 s{sT}, s{sW}, 2
    s_lshl_b32 s{sT}, s{sT}, 4
    s_and_b32 s{sT+1}, s{sW}, 3
    s_lshl_b32 s{sT+1}, s{sT+1}, 5
    s_add_u32 s{sT}, s{sT}, s{sT+1}
    s_lshl_b32 s{sT}, s{sT}, 2
    s_add_u32 s{sT}, s{sT}, {WSL}
    v_and_b32 v{T}, 3, v{vL}
    v_mul_u32_u24 v{T}, 2080, v{T}
    v_and_b32 v{T+1}, 60, v{vL}
    v_add3_u32 v{aWw}, v{T}, v{T+1}, s{sT}
    v_and_b32 v{T}, 1, v{vG}
    v_lshl_add_u32 v{T}, v{T}, 4, v{vJ}
    v_lshlrev_b32 v{T}, 2, v{T}
    v_mul_u32_u24 v{T+1}, {8*520}, v{T+6}
    v_add_u32 v{T+1}, v{T+1}, v{T}
    s_lshr_b32 s{sT}, s{sW}, 1
    s_mul_i32 s{sT}, s{sT}, 520
    s_and_b32 s{sT+1}, s{sW}, 1
    s_lshl_b32 s{sT+1}, s{sT+1}, 1
    s_add_u32 s{sT}, s{sT}, s{sT+1}
    s_add_u32 s{sT+1}, s{sT}, {WSL}
    s_sub_u32 s{sT+2}, {WSL+3*520+2}, s{sT}
    v_add_u32 v{aWr}, s{sT+1}, v{T+1}
    v_add_u32 v{aWr+1}, s{sT+2}, v{T+1}''')
    a(f'''v_and_b32 v{T}, 7, v{vJ}
    v_lshl_add_u32 v{T}, v{vG}, 5, v{T}
    v_mul_u32_u24 v{T}, 272, v{T}
    v_lshl_add_u32 v{T}, v{T+5}, 3, v{T}
    s_lshl_b32 s{sT}, s{sW}, 4
    s_add_u32 s{sT}, s{sT}, {O2}
    v_add_u32 v{aO2w}, s{sT}, v{T}
    v_mul_u32_u24 v{T}, 272, v{vG}
    v_lshl_add_u32 v{T}, v{vJ}, 4, v{T}
    s_mul_i32 s{sT}, s{sW}, {16*272}
    s_add_u32 s{sT}, s{sT}, {O2}
    v_add_u32 v{aO2r}, s{sT}, v{T}
    s_lshl_b32 s{sT}, s{sW}, 4
    v_add_u32 v{T}, s{sT}, v{vL}
    v_mul_u32_u24 v{aFl}, {FLS}, v{T}
    v_readfirstlane_b32 s{sNONCE}, v{aNon}''')
    SC = 1.0/(2048*512)/2*DG/1.00268
    TH = C1+40
    a(f'''s_add_u32 s{sT}, s{sKB}, s{sW}
    v_lshl_add_u32 v{T}, v{T+6}, 5, s{sT}
    v_cvt_f32_u32 v{T}, v{T}
    v_mul_f32 v{T}, {fh(1/1024)}, v{T}
    v_add_f32 v{T+1}, {fh(16/1024)}, v{T}
    v_sin_f32 v{TH}, v{T}
    v_cos_f32 v{TH+1}, v{T}
    v_sin_f32 v{TH+2}, v{T+1}
    v_cos_f32 v{TH+3}, v{T+1}''')
    for k in range(4): a(f'v_mul_f32 v{TH+k}, {fh(SC)}, v{TH+k}')
    for q in range(4):
        for i in range(4):
            a(f'ds_write_b32 v{aWw}, v{WL+4*q+i} offset:{4*(2080*q+130*i)}')
    a(f'''v_lshl_or_b32 v{SX}, v{SX+1}, 16, v{SX}
    v_and_b32 v{T}, 3, v{vL}
    v_mul_u32_u24 v{T}, {2080-512}, v{T}
    v_sub_u32 v{T}, v{aWw}, v{T}
    ds_write_b32 v{T}, v{SX} offset:{SPL-WSL}''')
    stamp(a, 'wst', 2)
    a(f'''s_lshl_b32 s{sT+1}, s{sW}, 12
    s_lshl_b32 s{sT+2}, s{sW}, 1
    s_and_b32 s{sT+2}, s{sT+2}, 12''')
    if SC1: a(f's_lshl_b32 s{sT+3}, s2, 15\ns_add_u32 s{sT+3}, s{sT+3}, s{sT+1}')
    else: a(f's_lshl_b32 s{sT+3}, s{sW}, 19')
    a(f'''s_add_u32 s{sT+1}, s{sT+1}, s{sT+2}
    s_add_u32 s{sT+1}, s{sT+1}, {I2}
    s_mov_b32 m0, s{sT+1}''')
    poll(a, FL1, aFl, T)
    stamp(a, 5)
    stamp(a, 'poll', 2)
    for q in range(4):
        a(f'buffer_load_dwordx4 v{aDma+(q&1)}, {srd(sWS)}, s{sT+3} offen sc1 lds')
        a.tag_vm('dma')
        if q < 3: a(f's_add_u32 s{sT+3}, s{sT+3}, {1024 if SC1 else 4*32768}\ns_add_u32 m0, m0, 1024')
    a('s_waitcnt lgkmcnt(0)\ns_barrier')
    stamp(a, 'barC', 2)
    a(f's_or_b32 s{sT}, s{sW}, s2')
    with a.cond('s_cbranch_scc1'):
        a(f'''s_mov_b32 s{sT}, {GEN}
        s_mov_b64 exec, 1
        buffer_store_dword v{aNon}, off, {srd(sWS)}, s{sT} sc1
        s_mov_b64 exec, -1''')
    raw = lambda t, r, q: ACC + 16*t + 4*r + q
    for t in range(2):
        for r in range(4):
            for q in range(4):
                a(f'ds_read_u16_d16_hi v{raw(t,r,q)}, v{aWr+(q>>1)} offset:{4*(2080*q+520*t+32*r)}')
    a(f's_or_b32 s{sT}, s{sW}, s{sB}')
    with a.cond('s_cbranch_scc1'):
        a(f'''v_and_b32 v{T}, 31, v{vL}
        v_lshlrev_b32 v{T}, 2, v{T}
        v_add_u32 v{T}, {SPL}, v{T}''')
        for r in range(4):
            for k in range(3): a(f'ds_read_b32 v{SP+6*r+2*k+1}, v{T} offset:{512*k+128*r}')
        for r in range(4):
            for k in range(3):
                a(f'v_lshlrev_b32 v{SP+6*r+2*k}, 16, v{SP+6*r+2*k+1}\nv_and_b32 v{SP+6*r+2*k+1}, 0xffff0000, v{SP+6*r+2*k+1}')
        a('s_mov_b32 exec_hi, 0')
        for r in range(4):
            a(f'''v_add_f32 v{raw(0,r,0)}, v{raw(0,r,0)}, v{SP+6*r}
            v_sub_f32 v{raw(0,r,1)}, v{raw(0,r,1)}, v{SP+6*r+1}
            v_add_f32 v{raw(0,r,2)}, v{raw(0,r,2)}, v{SP+6*r+2}
            v_sub_f32 v{raw(0,r,3)}, v{raw(0,r,3)}, v{SP+6*r+3}''')
            for q in range(4): a(f'v_mul_f32 v{raw(0,r,q)}, 0.5, v{raw(0,r,q)}')
        a('s_mov_b64 exec, -1')
    co = lambda t, r, k: CO + 24*t + 6*r + k
    for t in range(2):
        for r in range(4):
            a0, b0, a1, b1 = [raw(t,r,q) for q in range(4)]
            a(f'''v_add_f32 v{T}, v{a0}, v{a1}
            v_sub_f32 v{T+1}, v{b0}, v{b1}
            v_sub_f32 v{T+2}, v{a0}, v{a1}
            v_add_f32 v{T+3}, v{b0}, v{b1}
            v_mul_f32 v{T}, {fh(SC)}, v{T}
            v_mul_f32 v{T+1}, {fh(SC)}, v{T+1}
            v_fma_f32 v{co(t,r,0)}, -v{T+2}, v{TH+2*t}, v{T}
            v_fma_f32 v{co(t,r,1)}, -v{T+3}, v{TH+2*t}, v{T+1}
            v_fma_f32 v{co(t,r,2)}, v{T+2}, v{TH+2*t}, v{T}
            v_fma_f32 v{co(t,r,3)}, v{T+3}, v{TH+2*t}, v{T+1}
            v_mul_f32 v{co(t,r,4)}, v{T+2}, v{TH+2*t+1}
            v_mul_f32 v{co(t,r,5)}, v{T+3}, v{TH+2*t+1}''')
    a(f'''s_or_b32 s{sT}, s{sW}, s{sB}
    s_cselect_b32 s{sSPEC}, 0, s{sSPEC}
    s_cmp_eq_u32 s{sSPEC}, 0''')
    aMir = C1+44
    with a.cond('s_cbranch_scc1'):
        a('s_mov_b32 exec_hi, 0')
        for r in range(4):
            a(f'v_mul_f32 v{co(0,r,2)}, {fh(2*SC)}, v{SP+6*r+4}\nv_mul_f32 v{co(0,r,3)}, {fh(2*SC)}, v{SP+6*r+5}')
        a('s_mov_b64 exec, -1')
        a(f'''v_and_b32 v{T}, 1, v{vG}
        v_lshl_add_u32 v{T}, v{T}, 6, v{vJ}
        v_lshlrev_b32 v{aMir}, 3, v{T}
        v_add_u32 v{aMir}, {MIR}, v{aMir}
        s_cmp_eq_u32 s{sA}, 0
        s_cselect_b32 s{sT}, 0, -1''')
        for r in range(4):
            a(f'''v_add_u32 v{T+1}, {16*r}, v{T}
            v_sub_u32 v{T+1}, s{sT}, v{T+1}
            v_and_b32 v{T+1}, 127, v{T+1}
            v_lshlrev_b32 v{T+1}, 3, v{T+1}
            v_add_u32 v{aMir+1+r}, {MIR}, v{T+1}''')
    stamp(a, 'coef', 2)
    a.wait_vm_tag('dma')
    stamp(a, 'dma', 2)
    a('s_barrier')
    stamp(a, 6)
    stamp(a, 'bar', 2)
    for t in range(2):
        for pq in range(2):
            for h in range(2):
                a(f'ds_read2st64_b32 {vr(X+4*(2*t+pq)+2*h,2)}, v{aI2+2*t+pq} offset0:{16*h} offset1:{16*h+8}')
    for tile in range(4):
        for part in range(2):
            a(f'{MF16} {vr(acc(tile,part),4)}, {vr(X+4*tile,4)}, {vr(M1+4*part,4)}, 0')
    stamp(a, 's1', 2)
    for tile in range(4):
        twiddle(a, X+4*tile, acc(tile,0), acc(tile,1), T1, T)
    for tile in range(4):
        for part in range(2):
            a(f'{MF16} {vr(acc(tile,part),4)}, {vr(M8+4*part,4)}, {vr(X+4*tile,4)}, 0')
    def mult(t, YP, YQ):
        Pr, Pi, Qr, Qi = acc(2*t,0), acc(2*t,1), acc(2*t+1,0), acc(2*t+1,1)
        for r0 in (0, 2):
            rs = (r0, r0+1); tm = lambda r, k: T + 4*(r-r0) + k
            for r in rs:
                a(f'''v_mul_f32 v{tm(r,0)}, v{co(t,r,0)}, v{Pr+r}
                v_mul_f32 v{tm(r,1)}, v{co(t,r,0)}, v{Pi+r}
                v_mul_f32 v{tm(r,2)}, v{co(t,r,2)}, v{Qr+r}
                v_mul_f32 v{tm(r,3)}, v{co(t,r,2)}, v{Qi+r}''')
            for r in rs:
                a(f'''v_fma_f32 v{tm(r,0)}, -v{co(t,r,1)}, v{Pi+r}, v{tm(r,0)}
                v_fmac_f32 v{tm(r,1)}, v{co(t,r,1)}, v{Pr+r}
                v_fma_f32 v{tm(r,2)}, -v{co(t,r,3)}, v{Qi+r}, v{tm(r,2)}
                v_fmac_f32 v{tm(r,3)}, v{co(t,r,3)}, v{Qr+r}''')
            for r in rs:
                a(f'''v_fma_f32 v{tm(r,0)}, -v{co(t,r,4)}, v{YP[1]+r}, v{tm(r,0)}
                v_fmac_f32 v{tm(r,1)}, v{co(t,r,4)}, v{YP[0]+r}
                v_fmac_f32 v{tm(r,2)}, v{co(t,r,4)}, v{YQ[1]+r}
                v_fma_f32 v{tm(r,3)}, -v{co(t,r,4)}, v{YQ[0]+r}, v{tm(r,3)}''')
            for r in rs:
                a(f'''v_fma_f32 v{tm(r,0)}, -v{co(t,r,5)}, v{YP[0]+r}, v{tm(r,0)}
                v_fma_f32 v{tm(r,1)}, -v{co(t,r,5)}, v{YP[1]+r}, v{tm(r,1)}
                v_fmac_f32 v{tm(r,2)}, v{co(t,r,5)}, v{YQ[0]+r}
                v_fmac_f32 v{tm(r,3)}, v{co(t,r,5)}, v{YQ[1]+r}''')
            for r in rs:
                pack(a, X+8*t+r, tm(r,1), tm(r,0))
                pack(a, X+8*t+4+r, tm(r,3), tm(r,2))
    def mult_norm(t): mult(t, (acc(2*t+1,0), acc(2*t+1,1)), (acc(2*t,0), acc(2*t,1)))
    def mult_spec():
        YP, YQ = L, L+8
        a('s_mov_b32 exec_hi, 0')
        for r in range(4):
            a(f'ds_write2_b32 v{aMir}, v{acc(0,0)+r}, v{acc(0,1)+r} offset0:{32*r} offset1:{32*r+1}')
        for r in range(4):
            a(f'ds_read_b64 {vr(T+2*r,2)}, v{aMir+1+r}')
        a('s_mov_b64 exec, -1')
        for k in range(8):
            a(f'v_mov_b32 v{YP+k}, v{acc(1,0)+k}\nv_mov_b32 v{YQ+k}, v{acc(0,0)+k}')
        a('s_mov_b32 exec_hi, 0')
        for r in range(4):
            a(f'v_mov_b32 v{YP+r}, v{T+2*r}\nv_xor_b32 v{YP+4+r}, 0x80000000, v{T+2*r+1}')
        for k in range(8): a(f'v_mov_b32 v{YQ+k}, 0')
        a('s_mov_b64 exec, -1')
        mult(0, (YP, YP+4), (YQ, YQ+4))
    def istage1(t):
        for tile in (2*t, 2*t+1):
            for part in range(2):
                a(f'{MF16} {vr(acc(tile,part),4)}, {vr(X+4*tile,4)}, {vr(M8+4*part,4)}, 0')
    stamp(a, 's2', 2)
    a(f's_cmp_lg_u32 s{sSPEC}, 0')
    a.ifelse('s_cbranch_scc1', lambda: mult_norm(0), mult_spec)
    stamp(a, 'm0', 2)
    mult_norm(1)
    istage1(0)
    istage1(1)
    stamp(a, 'm1', 2)
    for tile in range(4):
        twiddle(a, X+4*tile, acc(tile,0), acc(tile,1), T1i, T)
    for tile in (0, 2, 1, 3):
        for part in range(2):
            a(f'{MF16} {vr(acc(tile,part),4)}, {vr(M1i+4*part,4)}, {vr(X+4*tile,4)}, 0')
    stamp(a, 'i2', 2)
    for pq in range(2):
        for r in range(4):
            for t in range(2):
                pack(a, L+8*pq+2*r+t, acc(2*t+pq,0)+r, acc(2*t+pq,1)+r)
            a(f'ds_write_b64 v{aO2w}, {vr(L+8*pq+2*r,2)} offset:{8*272*r+128*pq}')
    a(f's_lshl_b32 s{sT}, s{sW}, 19\ns_add_u32 s{sT}, s{sT}, {Z2}')
    stamp(a, 'wr', 2)
    a('s_waitcnt lgkmcnt(0)\ns_barrier')
    stamp(a, 'bar', 2)
    for q in range(4):
        a(f'ds_read_b128 {vr(X+4*q,4)}, v{aO2r} offset:{4*272*q}')
    for q in range(4):
        a(f'buffer_store_dwordx4 {vr(X+4*q,4)}, v{aZ2}, {srd(sWS)}, s{sT} offen {STF}')
        if q < 3: a(f's_add_u32 s{sT}, s{sT}, {4*32768}')
    stamp(a, 7)
    stamp(a, 'st', 2)
    a(f's_mul_i32 s{sT}, s2, {FLS}\ns_add_u32 s{sT}, s{sT}, {FL2}')
    a('s_waitcnt vmcnt(0)\ns_barrier')
    stamp(a, 8)
    stamp(a, 'drain', 2)
    a(f's_cmp_lg_u32 s{sW}, 0')
    with a.cond('s_cbranch_scc1'):
        a(f'''s_mov_b64 exec, 1
        buffer_store_dword v{aNon}, off, {srd(sWS)}, s{sT} sc1
        s_mov_b64 exec, -1''')
    a(f'''v_add_f32 v{T}, v{fJ}, v{fJ}
    v_add_f32 v{T+1}, 1.0, v{T}
    v_mul_f32 v{T+2}, 0x3e000000, v{fG}
    v_mul_f32 v{AR}, v{T}, v{T+2}
    v_mul_f32 v{AR+4}, v{T+1}, v{T+2}''')
    args4(a, AR, T, AR, 1/32); args4(a, AR+4, T+1, AR+4, 1/32)
    matrix(a, MD2, MD2+4, [AR+m for m in range(4)], ACC)
    matrix(a, MD2+8, MD2+12, [AR+4+m for m in range(4)], ACC+8)
    for m in range(8): a(f'v_xor_b32 v{MD2+16+m}, 0x80008000, v{MD2+8+m}')
    a(f'''v_mul_f32 v{T+2}, {fh(1/128)}, v{fG}
    v_mul_f32 v{AR}, v{T}, v{T+2}
    v_mul_f32 v{AR+4}, v{T+1}, v{T+2}''')
    args4(a, AR, T, AR, 1/512); args4(a, AR+4, T+1, AR+4, 1/512)
    trig4(a, [AR+m for m in range(8)], TW)
    scale(a, TW, 16, DG*DG)
    a(f'''v_mul_f32 v{T+2}, 0x3e000000, v{fG}
    v_mul_f32 v{AR}, v{fJ}, v{T+2}
    v_fmamk_f32 v{AR+2}, v{fJ}, {fh(1/16)}, v{AR}
    v_mul_f32 v{T+3}, 0.5, v{fJ}
    v_cmp_eq_u32 vcc, 0, v{vG}
    v_cndmask_b32 v{AR+1}, v{AR}, v{T+3}, vcc
    v_mov_b32 v{T+4}, 0x80008000
    v_cndmask_b32 v{T+4}, v{T+4}, 0, vcc''')
    matrix(a, MR+4, MR, [AR, AR+1, AR+2], ACC)
    a(f'''v_mov_b32 v{MR+3}, v{MR+2}
    v_xor_b32 v{MR+7}, 0x80008000, v{MR+6}
    v_xor_b32 v{MR+5}, v{T+4}, v{MR+5}''')
    aZ3, aE3w, aE3r, aOut = aX, aE1w, aE1r, aZ
    a(f'''s_lshl_b32 s{sT}, s{sW}, 12
    s_lshl_b32 s{sT+1}, s2, 15
    s_add_u32 s{sT+1}, s{sT+1}, {Z2}
    s_add_u32 s{sT}, s{sT}, s{sT+1}
    v_lshl_add_u32 v{aZ3}, v{vL}, 4, s{sT}
    v_mul_u32_u24 v{T}, {4*2312}, v{vG}
    v_mul_u32_u24 v{T+1}, 72, v{vJ}
    s_lshl_b32 s{sT}, s{sW}, 3
    v_add3_u32 v{aE3w}, v{T}, v{T+1}, s{sT}
    v_lshrrev_b32 v{T}, 3, v{vJ}
    v_mul_u32_u24 v{T}, 2312, v{T}
    v_and_b32 v{T+1}, 7, v{vJ}
    v_mul_u32_u24 v{T+1}, 144, v{T+1}
    v_lshl_add_u32 v{T+1}, v{vG}, 4, v{T+1}
    s_mul_i32 s{sT}, s{sW}, {2*2312}
    v_add3_u32 v{aE3r}, v{T}, v{T+1}, s{sT}
    s_lshl_b32 s{sT}, s{sW}, 8
    v_lshlrev_b32 v{T}, 21, v{vG}
    v_lshl_add_u32 v{T}, v{vJ}, 4, v{T}
    v_add_u32 v{aOut}, s{sT}, v{T}
    s_lshl_b32 s{sM}, s2, 12
    s_add_u32 s{sM+1}, s{sM}, {128*4096}
    s_add_u32 s{sM+2}, s{sM}, {2*128*4096}
    s_add_u32 s{sM+3}, s{sM}, {3*128*4096}
    s_cmp_lg_u32 s{sW}, 0''')
    with a.cond('s_cbranch_scc1'):
        for m in range(4):
            a(f'''v_lshl_or_b32 v{T}, v{vG}, 2, {m}
            v_lshl_add_u32 v{T}, v{T}, 4, v{vJ}
            v_sub_u32 v{T}, 256, v{T}
            v_and_b32 v{T+1}, 0xc0, v{T}
            v_and_b32 v{T+2}, 15, v{T}
            v_lshl_or_b32 v{T+1}, v{T+2}, 2, v{T+1}
            v_bfe_u32 v{T+2}, v{T}, 4, 2
            v_or_b32 v{T+1}, v{T+1}, v{T+2}
            v_lshlrev_b32 v{T+1}, 2, v{T+1}
            v_add_u32 v{aSp+m}, s{sT+1}, v{T+1}''')
    a(f'''v_lshl_add_u32 v{T}, v{vL}, 3, s{sW}
    v_mul_u32_u24 v{aFl}, {FLS}, v{T}''')
    poll(a, FL2, aFl, T)
    stamp(a, 9)
    def ld3(wh, t):
        a(f'buffer_load_dwordx4 {vr(X+8*wh+4*t,4)}, v{aZ3}, {srd(sWS)}, 0 offen offset:{2048*wh+1024*t} sc1')
    def norm3():
        for wh in range(2):
            ld3(wh, 0); ld3(wh, 1)
    def spec3():
        for wh in range(2):
            ld3(wh, 0)
            for m in range(4):
                a(f'buffer_load_dword v{X+8*wh+4+m}, v{aSp+m}, {srd(sWS)}, 0 offen offset:{2048*wh+1024} sc1')
        for wh in range(2):
            for m in range(4): a(f'v_xor_b32 v{X+8*wh+4+m}, 0x8000, v{X+8*wh+4+m}')
    a(f's_cmp_eq_u32 s{sW}, 0')
    a.ifelse('s_cbranch_scc1', norm3, spec3)
    for wh in range(2):
        for N in range(2):
            for part in range(2):
                a(f'{MF16} {vr(acc(2*wh+N,part),4)}, {vr(X+8*wh,4)}, {vr(MD2+8*N+4*part,4)}, 0')
        if wh == 0: stamp(a, 10)
        for N in range(2):
            for part in range(2):
                a(f'{MF16} {vr(acc(2*wh+N,part),4)}, {vr(X+8*wh+4,4)}, {vr(MD2+16*N+4*part,4)}, {vr(acc(2*wh+N,part),4)}')
    for tile in range(4):
        twiddle(a, L+4*tile, acc(tile,0), acc(tile,1), TW+8*(tile&1), T)
    for tile in (0, 2, 1, 3):
        for part in range(2):
            a(f'{MF16} {vr(acc(tile,part),4)}, {vr(MD1+4*part,4)}, {vr(L+4*tile,4)}, 0')
    for N in range(2):
        for r in range(4):
            for wh in range(2):
                pack(a, X+8*N+2*r+wh, acc(2*wh+N,0)+r, acc(2*wh+N,1)+r)
            a(f'ds_write_b64 v{aE3w}, {vr(X+8*N+2*r,2)} offset:{E3+2312*r+1152*N}')
    a('s_waitcnt lgkmcnt(0)\ns_barrier')
    for t in range(4):
        for h in range(2):
            a(f'ds_read_b64 {vr(L+4*t+2*h,2)}, v{aE3r} offset:{E3+1152*(t&1)+72*(t>>1)+8*h}')
    for t in range(4):
        for part in range(2):
            a(f'{MF16} {vr(acc(t,part),4)}, {vr(MR+4*part,4)}, {vr(L+4*t,4)}, 0')
    for r in range(4):
        for t in range(4):
            a(f'v_cvt_pk_bf16_f32 v{X+4*r+t}, v{acc(t,0)+r}, v{acc(t,1)+r}')
        a(f'buffer_store_dwordx4 {vr(X+4*r,4)}, v{aOut}, {srd(sOUT)}, s{sM+r} offen')
    stamp(a, 11)
    if OPT['stamps']:
        a('s_waitcnt vmcnt(0)')
        stamp(a, 'end')
        stamps_out(a, len(NAMES['A'])+1, T, {k: k for k in range(13)})
    calib(a)
    a('s_endpgm')
    a.label('L_A_end')
    a.reset_counters()

P_ROWS = list(range(8)) + [256,258,260,262] + [512,516,768,772] + [1024,1280,1536,1792,1800]
def d_rows():
    h0 = list(range(8)) + [512,516,516] + [1024,1024] + [1536,1536,1536]
    h1 = [256,256,258,260,260,260,262,262] + [768,772,772] + [1280,1280] + [1792,1800,1800]
    return h0, h1
def place_rows():
    h0, h1 = d_rows()
    row = lambda i: (h0, h1)[(i >> 2) & 1][4*(i >> 3) + (i & 3)]
    G1 = {row(i) for i in itertools.chain(range(0,4), range(12,16), range(20,28))}
    G2 = {row(i) for i in itertools.chain(range(4,12), range(16,20), range(28,32))}
    both = sorted(G1 & G2); o1 = sorted(G1 - G2); o2 = sorted(G2 - G1)
    phys = {}
    pair = list(range(5)); single = list(range(37, 48))
    while pair:
        r = pair.pop(0); phys[o1.pop(0)] = 32 + r; phys[o2.pop(0)] = 48 + r
    for l0 in both + o1 + o2: phys[l0] = single.pop(0)
    assert sorted(phys) == sorted(P_ROWS) and len(set(phys.values())) == len(phys) and max(phys.values()) < 53
    for G in (G1, G2): assert len({phys[x] % 16 for x in G}) == len(G)
    return phys, [phys[row(i)] for i in range(32)]

def gen_B(a):
    vL, vJ, vG, vJ32 = 1, 2, 3, 4
    T = 5
    UL = 16
    PR = 32
    D = 40
    FR = 56
    W_ = 120
    ACC = 160
    BAND = 192
    GA = 200
    AD = 232
    aTA, aTB, aKw, aKe, aK3z, aK3w, aUw, aUz, aKA, aUB, aK3r, aSw, aSr, aOut, mTop, mBot = range(AD, AD+16)
    vDT, vDS = 248, 249
    RP = 14656
    KC = 64; KP = 2240; K3 = KC + 4*KP; ST = K3 + 1536; SP_ = RP; STB = 2048; U = 8*RP; UP = 4608
    assert ST + 2*STB <= RP and U + 8*UP <= LDS_BYTES
    TP = 272
    sP = 28 + 12
    sD0 = 56; sSE, sSO = 57, 58; sH = 59; sH2 = 36
    phys, rowmap = place_rows()

    ROLE[0] = 'B'
    a.label('L_B')
    prefetch_code(a, 'L_B', 'L_B_end', 250)
    a(f'''s_load_dwordx4 s[{sP}:{sP+3}], s[0:1], 32
    s_load_dwordx4 s[{sP+4}:{sP+7}], s[0:1], 48
    s_load_dwordx4 s[{sP+8}:{sP+11}], s[0:1], 64
    s_load_dwordx4 s[{sP+12}:{sP+15}], s[0:1], 80
    s_load_dwordx2 s[{sX}:{sX+1}], s[0:1], 24
    s_load_dwordx2 s[{sOUT}:{sOUT+1}], s[0:1], 96
    s_load_dwordx2 s[{sWS}:{sWS+1}], s[0:1], 112
    s_mov_b32 s{sWS+2}, {WS_SIZE}
    s_mov_b32 s{sWS+3}, 0x20000
    s_mov_b32 s{sX+2}, 4194304
    s_mov_b32 s{sX+3}, 0x20000
    s_mov_b32 s{sOUT+2}, 8388608
    s_mov_b32 s{sOUT+3}, 0x20000
    v_lshrrev_b32 v{T+2}, 6, v0
    v_and_b32 v{vL}, 63, v0
    v_readfirstlane_b32 s{sW}, v{T+2}
    v_and_b32 v{vJ}, 15, v0
    v_bfe_u32 v{vG}, v0, 4, 2
    v_and_b32 v{vJ32}, 31, v0
    s_and_b32 s{sT}, s2, 7
    s_lshl_b32 s{sT}, s{sT}, 7
    s_bfe_u32 s{sT+1}, s2, 0x40003
    s_lshl_b32 s{sT+2}, s{sT+1}, 3
    s_add_u32 s{sD0}, s{sT}, s{sT+2}
    s_add_u32 s{sT}, s{sD0}, s{sW}
    s_lshl_b32 s{sT+2}, s{sT}, 8
    s_lshl_b32 s{sT}, s{sT}, 1
    v_lshl_add_u32 v{T+2}, v{vL}, 2, s{sT+2}
    v_mov_b32 v{T+3}, s{sT}
    s_and_b32 s{sT+1}, s{sT+1}, 7
    s_lshl_b32 s{sT+1}, s{sT+1}, 5
    v_add_u32 v{T+4}, s{sT+1}, v0
    v_and_b32 v{T+4}, 0xff, v{T+4}
    s_lshl_b32 s{sT}, s{sD0}, 1
    v_lshl_add_u32 v{T+5}, v{T+4}, 13, s{sT}
    s_mov_b32 s{sH}, 0x200000
    s_mov_b32 s{sH2}, 0x1000
    s_mov_b32 s{sH2+1}, 0x201000''')
    a(f'global_load_short_d16_hi v{PR+6}, v{T+3}, s[{sP+12}:{sP+13}]')
    for k in range(6):
        a(f'global_load_dword v{PR+k}, v{T+2}, s[{sP+2*k}:{sP+2*k+1}]')
    a(f'global_load_short_d16_hi v{vDS}, v{T+3}, s[{sP+14}:{sP+15}]')
    aU = 252
    a(f'v_mov_b32 v{aU}, v{T+5}')
    ULh = (ACC+16, UL)
    def uload(k):
        hf, row = k >> 2, k & 3
        so = (('0', f's{sH2}'), (f's{sH}', f's{sH2+1}'))[hf][row >> 1]
        return f'buffer_load_dwordx4 {vr(ULh[hf]+4*row,4)}, v{aU}, {srd(sX)}, {so} offen offset:{2048*(row&1)}'
    stamp(a, 1)
    a(f'''v_lshlrev_b32 v{aUw}, 3, v{T+4}
    v_add_u32 v{aUw}, {U+512}, v{aUw}
    s_mul_i32 s{sT}, s{sW}, {UP}
    s_add_u32 s{sT}, s{sT}, {U}
    v_lshl_add_u32 v{aUz}, v{vL}, 3, s{sT}
    v_lshlrev_b32 v{T}, 4, v{vG}
    v_lshl_add_u32 v{T}, v{vJ}, 5, v{T}
    v_add_u32 v{aUB}, s{sT}, v{T}
    v_mov_b32 v6, 0
    v_mov_b32 v7, 0
    ds_write_b64 v{aUz}, v[6:7]
    s_mul_i32 s{sT}, s{sW}, {RP}
    s_mov_b32 m0, s{sT}
    v_lshrrev_b32 v{T+1}, 5, v{vL}
    v_lshl_add_u32 v{T+2}, v{T+1}, 4, s{sT}
    v_mul_u32_u24 v{aTB}, {TP}, v{vJ32}
    v_add_u32 v{aTB}, v{aTB}, v{T+2}''')
    words = [sum((rowmap[4*k+b]) << (8*b) for b in range(4)) for k in range(8)]
    a(f'v_lshrrev_b32 v{T+3}, 2, v{vJ32}\nv_mov_b32 v{T+4}, {hex(words[0])}')
    for k in range(1, 8):
        a(f'v_cmp_eq_u32 vcc, {k}, v{T+3}\nv_mov_b32 v{T+5}, {hex(words[k])}\nv_cndmask_b32 v{T+4}, v{T+4}, v{T+5}, vcc')
    a(f'''v_and_b32 v{T+3}, 3, v{vL}
    v_lshlrev_b32 v{T+5}, 3, v{T+3}
    v_bfe_u32 v{T+4}, v{T+4}, v{T+5}, 8
    v_mul_u32_u24 v{aTA}, {TP}, v{T+4}
    v_add_u32 v{aTA}, v{aTA}, v{T+2}''')
    a(f'''s_add_u32 s{sT}, s{sT}, {KC}
    v_lshlrev_b32 v{T+4}, 9, v{T+1}
    v_lshl_add_u32 v{T+4}, v{vJ32}, 4, v{T+4}
    v_add_u32 v{aKw}, s{sT}, v{T+4}
    v_mul_u32_u24 v{T+4}, {KP}, v{vG}
    v_lshl_add_u32 v{T+4}, v{vJ}, 2, v{T+4}
    v_add_u32 v{aKe}, s{sT}, v{T+4}
    v_bfe_u32 v{T+5}, v{vL}, 2, 2
    v_mul_u32_u24 v{T+4}, {KP}, v{T+5}
    v_lshl_add_u32 v{T+4}, v{T+3}, 3, v{T+4}
    v_lshlrev_b32 v{T+6}, 4, v{vG}
    v_sub_u32 v{T+4}, v{T+4}, v{T+6}
    v_add_u32 v{aKA}, s{sT}, v{T+4}
    s_add_u32 s{sT}, s{sT}, {K3-KC}
    v_lshrrev_b32 v{T+4}, 3, v{vL}
    v_mul_u32_u24 v{T+4}, 192, v{T+4}
    v_and_b32 v{T+6}, 7, v{vL}
    v_lshl_add_u32 v{T+4}, v{T+6}, 3, v{T+4}
    v_add_u32 v{aK3z}, s{sT}, v{T+4}
    v_lshlrev_b32 v{T+4}, 5, v{T+1}
    v_and_b32 v{T+6}, 30, v{vL}
    v_add3_u32 v{aK3w}, v{T+4}, v{T+6}, s{sT}
    v_and_b32 v{T+6}, 1, v{vL}
    v_lshlrev_b32 v{T+6}, 6, v{T+6}
    v_sub_u32 v{aK3w}, v{aK3w}, v{T+6}
    v_mul_u32_u24 v{T+4}, 192, v{T+5}
    v_lshl_add_u32 v{T+4}, v{T+3}, 3, v{T+4}
    v_lshlrev_b32 v{T+6}, 3, v{vG}
    v_sub_u32 v{T+4}, v{T+4}, v{T+6}
    v_add_u32 v{aK3r}, s{sT}, v{T+4}
    s_add_u32 s{sT}, s{sT}, {ST-K3}
    v_lshlrev_b32 v{T+4}, 5, v{vJ}
    v_lshl_add_u32 v{T+4}, v{vG}, 3, v{T+4}
    v_add_u32 v{aSw}, s{sT}, v{T+4}
    s_lshl_b32 s{sT}, s{sW}, 8
    s_add_u32 s{sT}, s{sT}, {ST}
    v_mul_u32_u24 v{T+4}, {SP_}, v{T+5}
    v_lshl_add_u32 v{T+4}, v{T+3}, 3, v{T+4}
    v_lshl_add_u32 v{T+4}, v{vG}, 5, v{T+4}
    v_add_u32 v{aSr}, s{sT}, v{T+4}
    s_lshl_b32 s{sT}, s{sW}, 19
    s_lshl_b32 s{sT+1}, s{sD0}, 1
    s_add_u32 s{sT}, s{sT}, s{sT+1}
    s_add_u32 s{sT}, s{sT}, 2048
    v_lshl_add_u32 v{aOut}, v{vL}, 12, s{sT}
    s_mov_b32 s{sSE}, 0x05040100
    s_mov_b32 s{sSO}, 0x07060302''')
    a(f'''v_lshlrev_b32 v{T+4}, 1, v{vJ}
    v_sub_u32 v{T+4}, v{T+4}, v{vG}
    v_cmp_ge_i32 vcc, 4, v{T+4}
    v_mov_b32 v{T+6}, 0xffff
    v_cndmask_b32 v{mTop}, 0, v{T+6}, vcc
    v_cmp_ge_i32 vcc, 3, v{T+4}
    v_cndmask_b32 v{mTop}, v{mTop}, -1, vcc''')
    for p, (msk, sh) in enumerate(((0x1ff, 4), (0x7f, 5))):
        a(f'''v_add_u32 v{T+4}, {sh}, v{vJ}
        v_mov_b32 v{T+6}, {msk}
        v_lshlrev_b32 v{T+4}, v{T+4}, v{T+6}
        v_lshlrev_b32 v{T+6}, 3, v{vG}
        v_lshrrev_b32 v{T+4}, v{T+6}, v{T+4}''')
        for m in range(4):
            a(f'''v_bfe_i32 v{T+6}, v{T+4}, {2*m}, 1
            v_bfe_i32 v{T+7}, v{T+4}, {2*m+1}, 1
            v_and_b32 v{T+6}, 0x3f80, v{T+6}
            v_and_b32 v{T+7}, 0x3f800000, v{T+7}
            v_or_b32 v{BAND+4*p+m}, v{T+6}, v{T+7}''')
    L2E = math.log2(math.e)
    hi = struct.unpack('<f', struct.pack('<f', L2E))[0]; lo = L2E - hi
    a(f'''v_mul_f32 v{T}, {fh(hi)}, v{PR+6}
    v_mov_b32 v{T+2}, {fh(hi)}
    v_fma_f32 v{T+1}, v{PR+6}, v{T+2}, -v{T}
    v_fmamk_f32 v{T+1}, v{PR+6}, {fh(lo)}, v{T+1}
    v_exp_f32 v{T}, v{T}
    v_mul_f32 v{T+1}, {fh(math.log(2))}, v{T+1}
    v_fmac_f32 v{T}, v{T}, v{T+1}
    v_cvt_pk_bf16_f32 v{T}, v{T}, v{T}
    v_and_b32 v{vDT}, 0xffff0000, v{T}''')
    a(f'v_mov_b32 v{vDS}, v{vDS}')
    stamp(a, 2)
    stamp(a, 'dt', 3)

    ANC = (W_+6, ACC)
    def anchors(p):
        o = []
        e = o.append
        R = FR + 20*p
        Ar, Ai, Br, Bi, Cr, Ci = range(R, R+6)
        for k in range(6):
            if p == 0: e(f'v_lshlrev_b32 v{R+k}, 16, v{PR+k}')
            else: e(f'v_and_b32 v{R+k}, 0xffff0000, v{PR+k}')
        for k in range(4): e(f'v_mul_f32 v{R+k}, v{vDT}, v{R+k}')
        e(f'v_mul_f32 v{Ar}, {fh(L2E)}, v{Ar}')
        e(f'v_mul_f32 v{Ai}, {fh(1/(2*math.pi))}, v{Ai}')
        w1, w8, w128, w256, w2, w4, c = [ANC[p]+2*i for i in range(7)]
        tm = R+6
        ls = ((w8, 8), (w128, 128), (w1, 1), (w256, 256))
        for i, (w, l) in enumerate(ls):
            if l != 1:
                e(f'v_mul_f32 v{tm+3*i}, {fh(l)}, v{Ar}'); e(f'v_mul_f32 v{tm+3*i+1}, {fh(l)}, v{Ai}')
        for i, (w, l) in enumerate(ls): e(f'v_fract_f32 v{tm+3*i+1}, v{Ai if l == 1 else tm+3*i+1}')
        e(f'v_mul_f32 v{c}, v{Cr}, v{Br}'); e(f'v_mul_f32 v{c+1}, v{Cr}, v{Bi}')
        e(f'v_fma_f32 v{c}, -v{Ci}, v{Bi}, v{c}'); e(f'v_fmac_f32 v{c+1}, v{Ci}, v{Br}')
        e(f'v_mul_f32 v{c}, {fh(DG)}, v{c}'); e(f'v_mul_f32 v{c+1}, {fh(-DG)}, v{c+1}')
        for i, (w, l) in enumerate(ls): e(f'v_exp_f32 v{tm+3*i}, v{Ar if l == 1 else tm+3*i}')
        for i, (w, l) in enumerate(ls):
            e(f'v_cos_f32 v{w}, v{tm+3*i+1}'); e(f'v_sin_f32 v{w+1}, v{tm+3*i+1}')
        e(f'v_mul_f32 v{tm+3}, {fh(DG)}, v{tm+3}')
        for i, (w, l) in enumerate(ls):
            e(f'v_mul_f32 v{w}, v{w}, v{tm+3*i}'); e(f'v_mul_f32 v{w+1}, v{w+1}, v{tm+3*i}')
        return o
    def kpass(p):
        o = []
        R = W_
        w1, w8, w128, w256, w2, w4, c = [ANC[p]+2*i for i in range(7)]
        tm = R+20
        cv = [T+k for k in range(8)]; cvi = [0, 0]
        def put(row, re, im, neg):
            d = cv[2*cvi[0] + (cvi[1] & 1)]; cvi[1] += 1
            return [f'v_perm_b32 v{d}, v{im}, v{re}, s{sSO}', f'ds_write_addtid_b32 v{d} offset:{row*TP}']
        def cmul(d, x, y, cj=False):
            if cj: return [f'v_mul_f32 v{d}, v{x}, v{y}', f'v_mul_f32 v{d+1}, v{x+1}, v{y}',
                    f'v_fmac_f32 v{d}, v{x+1}, v{y+1}', f'v_fma_f32 v{d+1}, -v{x}, v{y+1}, v{d+1}']
            return [f'v_mul_f32 v{d}, v{x}, v{y}', f'v_mul_f32 v{d+1}, v{x}, v{y+1}',
                    f'v_fma_f32 v{d}, -v{x+1}, v{y+1}, v{d}', f'v_fmac_f32 v{d+1}, v{x+1}, v{y}']
        def sq(d, x):
            return [f'v_mul_f32 v{d}, v{x}, v{x}', f'v_add_f32 v{d+1}, v{x}, v{x}',
                    f'v_fma_f32 v{d}, -v{x+1}, v{x+1}, v{d}', f'v_mul_f32 v{d+1}, v{d+1}, v{x+1}']
        qa = [tm, tm+2]; qb = [tm+4, tm+6]; pa = [tm+8, tm+10]; pb = [R, R+2]; pc = [R+4, tm+12]
        chA = [[f'v_mov_b32 v{cv[1]}, 0x3f80', f'ds_write_addtid_b32 v{cv[1]} offset:0',
                f'v_mul_f32 v{qa[1]}, {fh(DG)}, v{w8}', f'v_mul_f32 v{qa[1]+1}, {fh(DG)}, v{w8+1}'] + put(1, qa[1], qa[1]+1, 0)]
        cur = qa[1]
        for j in range(2, 16):
            d = qa[j & 1]; chA.append(cmul(d, cur, w8) + put(j, d, d+1, 0)); cur = d
        cvi[0] = 1
        chB = [put(16, w128, w128+1, 0)]; cur = w128
        for j in range(17, 32):
            d = qb[j & 1]; chB.append(cmul(d, cur, w8) + put(j, d, d+1, 0)); cur = d
        cvi[0] = 2
        chC = [put(phys[0], c, c+1, 1), sq(w2, w1), sq(w4, w2)]; cur = c
        for l in range(1, 8):
            d = pa[l & 1]; chC.append(cmul(d, cur, w1, True) + put(phys[l], d, d+1, 1)); cur = d
        cvi[0] = 3
        chD = []; cur = c
        for k in range(1, 8):
            d = pb[k & 1]; chD.append(cmul(d, cur, w256, True) + put(phys[256*k], d, d+1, 1)); cur = d
            if k == 1: br = [(w2, 258), (w2, 260), (w2, 262)]
            elif k < 4: br = [(w4, 256*k+4)]
            elif k == 7: br = [(w8, 1800)]
            else: br = []
            c2 = d
            for n, (w, l) in enumerate(br):
                d2 = pc[n & 1]; chD.append(cmul(d2, c2, w, True) + put(phys[l], d2, d2+1, 1)); c2 = d2
        for st in chC[:3]: o += st
        chains = [chA, chB, chC[3:], chD]
        order = []
        idx = [0]*4; lens = [len(x) for x in chains]
        while any(idx[i] < lens[i] for i in range(4)):
            cand = sorted([i for i in range(4) if idx[i] < lens[i]], key=lambda i: -(lens[i]-idx[i]))[:2]
            steps = [chains[i][idx[i]] for i in cand]
            for i in cand: idx[i] += 1
            for tup in itertools.zip_longest(*steps):
                o += [x for x in tup if x]
        return o
    def treads():
        for s in range(8):
            a(f'ds_read_b128 {vr(FR+8*s,4)}, v{aTA} offset:{32*s}')
            a(f'ds_read_b128 {vr(FR+8*s+4,4)}, v{aTB} offset:{32*s}')
    def kmf(s, first):
        return f'{MF32} {vr(D,16)}, {vr(FR+8*s,4)}, {vr(FR+8*s+4,4)}, {"0" if first else vr(D,16)}'
    S = [x for pr in zip(anchors(0), anchors(1)) for x in pr]
    S.append(lambda: stamp(a, 'anc', 3))
    S += kpass(0)
    S.append(lambda: (stamp(a, 'p1', 3), treads()))
    p2 = kpass(1)
    pos = {OPT.get('mf0', 30) + OPT.get('mfs', 1)*s: s for s in range(8)}
    for k, x in enumerate(p2):
        if k in pos: S.append(kmf(pos[k], pos[k] == 0))
        S.append(x)
    u0, us = OPT.get('u0', 0), OPT.get('us', 90)
    upos = {u0 + us*k: k for k in range(8)}
    assert max(upos) < len(S)
    for k, x in enumerate(S):
        if k in upos:
            a(f's_cmp_gt_u32 s{sW}, 3')
            with a.cond('s_cbranch_scc1', 'old'): a(uload(upos[k]))
        if callable(x): x()
        else: a(x)
    treads()
    stamp(a, 3)
    stamp(a, 'p2', 3)
    for s in range(8): a(kmf(s, False))
    stamp(a, 'mf', 3)
    def uwrite(hf):
        a(f's_cmp_gt_u32 s{sW}, 3')
        with a.cond('s_cbranch_scc1', 'old'):
            for c in range(8):
                d = W_ + 2*c
                for h in range(2):
                    a(f'v_perm_b32 v{d+h}, v{ULh[hf]+8*h+4+(c>>1)}, v{ULh[hf]+8*h+(c>>1)}, s{sSO if c&1 else sSE}')
                a(f'ds_write_b64 v{aUw}, {vr(d,2)} offset:{UP*c+2048*hf}')
    a('v_mov_b32 v6, 0\nv_mov_b32 v7, 0')
    a(f'ds_write_b64 v{aK3z}, v[6:7]')
    a(f'ds_write_b32 v{aKe}, v6 offset:8')
    if OPT.get('uearly', 1): uwrite(0)
    stamp(a, 'uw', 3)
    G = lambda sl, r: FR + 16*sl + 4*r
    for k in (G(0,2), G(0,3), T+3): a(f'v_mov_b32 v{k}, 0')
    a('s_mov_b64 exec, 1')
    a(f'v_add_f32 v{D}, v{D}, v{vDS}')
    a('s_mov_b64 exec, -1')
    dpp = lambda d, x, ctl, rm=0xf: a(f'v_mov_b32_dpp v{d}, v{x} {ctl} row_mask:{hex(rm)} bank_mask:0xf')
    pk = lambda d, x, y: a(f'v_cvt_pk_bf16_f32 v{d}, v{x}, v{y}')
    dpp(D+7, D+8, 'wave_rol:1', 0x8); dpp(D+10, D+11, 'wave_rol:1', 0x8); dpp(D+12, D+13, 'wave_rol:1', 0x8)
    dpp(D+7, D, 'wave_shl:1', 0xc); dpp(D+10, D+8, 'wave_shl:1'); dpp(D+12, D+11, 'wave_shl:1'); dpp(D+14, D+13, 'wave_shl:1', 0x3)
    pk(T+4, D+11, D+11)
    k0 = [D+i for i in range(8)]; k1 = [D+8, D+8, D+8, D+9, D+9, D+9, D+10, D+10]
    for m in range(4): pk(G(0,0)+m, k0[2*m], k0[2*m+1])
    a(f'v_readlane_b32 s{sT+1}, v{T+4}, 0')
    a(f'ds_write_b128 v{aKw}, {vr(G(0,0),4)} offset:32')
    dpp(T+3, D+7, 'wave_shr:1')
    for m in range(1, 4): pk(G(0,1)+m, k0[2*m-1], k0[2*m])
    pk(G(0,1), T+3, D)
    for m in range(3): pk(G(0,2)+1+m, k0[2*m], k0[2*m+1])
    dpp(G(0,2), G(0,0)+3, 'wave_shr:1')
    a(f'ds_write_b128 v{aKw}, {vr(G(0,1),4)} offset:{KP+32}')
    for m in range(3): a(f'v_mov_b32 v{G(0,3)+1+m}, v{G(0,1)+m}')
    dpp(G(0,3), G(0,1)+3, 'wave_shr:1')
    a(f'ds_write_b128 v{aKw}, {vr(G(0,2),4)} offset:{2*KP+32}')
    for m in range(4): pk(G(1,0)+m, k1[2*m], k1[2*m+1])
    a(f'ds_write_b128 v{aKw}, {vr(G(0,3),4)} offset:{3*KP+32}')
    for m in range(1, 4): pk(G(1,1)+m, k1[2*m-1], k1[2*m])
    a(f'v_mov_b32 v{G(1,1)}, v{G(1,0)}')
    a(f'ds_write_b128 v{aKw}, {vr(G(1,0),4)} offset:{1024+32}')
    dpp(G(1,2), G(0,0)+3, 'wave_ror:1', 0x1); dpp(G(1,3), G(0,1)+3, 'wave_ror:1', 0x1)
    for m in range(3): a(f'v_mov_b32 v{G(1,2)+1+m}, v{G(1,0)+m}')
    a(f'ds_write_b128 v{aKw}, {vr(G(1,1),4)} offset:{KP+1024+32}')
    dpp(G(1,2), G(1,0)+3, 'wave_shr:1'); dpp(G(1,3), G(1,1)+3, 'wave_shr:1')
    for m in range(3): a(f'v_mov_b32 v{G(1,3)+1+m}, v{G(1,1)+m}')
    a(f'ds_write_b128 v{aKw}, {vr(G(1,2),4)} offset:{2*KP+1024+32}')
    a(f'v_readlane_b32 s{sT}, v{G(1,1)+3}, 63')
    a(f'v_and_b32 v{T+4}, s{sT+1}, v{mTop}')
    a(f'ds_write_b128 v{aKw}, {vr(G(1,3),4)} offset:{3*KP+1024+32}')
    pk(T+5, D+11, D+12); pk(T+6, D+13, D+14)
    a(f'v_writelane_b32 v{T+4}, s{sT}, 48')
    a('s_mov_b32 vcc_lo, 0xaaaaaaaa\ns_mov_b32 vcc_hi, 0xaaaaaaaa')
    dpp(T+7, T+6, 'quad_perm:[1,1,3,3]')
    a(f'ds_write_b32 v{aKe}, v{T+4} offset:{2*(1024+16)}')
    a(f'v_cndmask_b32 v{T+7}, v{T+7}, v{T+5}, vcc')
    for r in range(4):
        off = 32 + 64 + 194*r
        a(f'ds_write_b16_d16_hi v{aK3w}, v{T+7} offset:{off}')
        a(f'ds_write_b16 v{aK3w}, v{T+7} offset:{768+off}')
    stamp(a, 'kw', 3)
    if not OPT.get('uearly', 1): uwrite(0)
    a('s_waitcnt lgkmcnt(0)\ns_barrier')
    stamp(a, 4)
    stamp(a, 'bar2', 3)
    accv = lambda t: vr(ACC+4*t, 4)
    started = set()
    def mf(t, A, B):
        a(f'{MF16} {accv(t)}, {vr(A,4)}, {vr(B,4)}, {accv(t) if t in started else "0"}'); started.add(t)
    def ldA(dst, dl):
        for hf in range(2):
            a(f'ds_read_b64_tr_b16 {vr(dst+2*hf,2)}, v{aKA} offset:{32+32*dl-8*hf}')
    def ldB(dst, jb, r):
        a(f'ds_read_b128 {vr(dst,4)}, v{aUB} offset:{512+512*jb-32*r}')
    def conv_group(jbs, pairs, extra=None):
        nB = len(jbs)
        def regs(buf):
            base = FR + 48*buf
            return (lambda x: base + 4*x), (lambda jb: base + 16 + 4*jbs.index(jb))
        def loads(r, buf):
            fa, fb = regs(buf)
            seq = []
            for k in range(max(4, nB)):
                if k < nB: seq.append(('B', jbs[k]))
                if k < 4: seq.append(('A', k))
            return [(lambda kind=kind, v=v: ldB(fb(v), v, r) if kind == 'B' else ldA(fa(v), r+16*v)) for kind, v in seq]
        for f in loads(1, 0): f()
        for n, r in enumerate(range(1, 16, 2)):
            fa, fb = regs(n & 1)
            nxt = loads(r+2, (n+1) & 1) if r < 15 else []
            todo = list(pairs)
            k = 0
            for (x, t) in todo:
                mf(t, fa(x), fb(t-x))
                if k < len(nxt): nxt[k](); k += 1
            for f in nxt[k:]: f()
            if extra and r == 1: extra(fb)
    def extra65(fb):
        ldA(GA, 65)
        for t in range(4, 8): mf(t, GA, fb(t-4))
    pairs_a = sorted([(x, t) for t in range(4) for x in range(t+1)], key=lambda p: max(p[0], p[1]-p[0]))
    conv_group([0,1,2,3], pairs_a, extra65)
    stamp(a, 5)
    stamp(a, '1a', 3)
    for yb in range(4):
        for p in range(2):
            a(f'ds_read_b128 {vr(FR+8*yb+4*p,4)}, v{aUB} offset:{512+512*yb-48+16*p}')
    for dl in range(4):
        for s in range(2):
            a(f'ds_read_b64_tr_b16 {vr(FR+32+4*dl+2*s,2)}, v{aK3r} offset:{768*s+32*(dl+1)}')
    for yb in range(4):
        for p in range(2):
            a(f'{MF16} {vr(GA+8*yb+4*p,4)}, {vr(FR+8*yb+4*p,4)}, {vr(BAND+4*p,4)}, 0')
    def stage(h):
        for t in range(4):
            for k in range(2):
                a(f'v_cvt_pk_bf16_f32 v{W_+16+2*t+k}, v{ACC+16*h+4*t+2*k}, v{ACC+16*h+4*t+2*k+1}')
            a(f'ds_write_b64 v{aSw}, {vr(W_+16+2*t,2)} offset:{STB*h+512*t}')
    stage(0)
    for yb in range(4):
        for p in range(2):
            for k in range(2):
                a(f'v_cvt_pk_bf16_f32 v{FR+4*yb+2*p+k}, v{GA+8*yb+4*p+2*k}, v{GA+8*yb+4*p+2*k+1}')
    for yb in range(4):
        for t in range(4+yb, 8):
            mf(t, FR+4*yb, FR+32+4*(t-yb-4))
    stamp(a, 's3', 3)
    uwrite(1)
    stamp(a, 'uw', 3)
    a('s_waitcnt lgkmcnt(0)\ns_barrier')
    stamp(a, 6)
    stamp(a, 'bar3', 3)
    def flush(h):
        for q in range(2):
            for hc in range(2):
                a(f'ds_read_b64_tr_b16 {vr(GA+4*q+2*hc,2)}, v{aSr} offset:{STB*h+4*SP_*hc+128*q}')
        for q in range(2):
            a(f's_mov_b32 s{sT}, {(1024*h+64*q)*4096}')
            a(f'buffer_store_dwordx4 {vr(GA+4*q,4)}, v{aOut}, {srd(sOUT)}, s{sT} offen')
    flush(0)
    pairs_b = sorted([(x, t) for t in range(4, 8) for x in range(4)], key=lambda p: max(p[0], p[1]-p[0]-1))
    conv_group([1,2,3,4,5,6,7], pairs_b)
    stamp(a, 7)
    stamp(a, '1b', 3)
    stage(1)
    a('s_waitcnt lgkmcnt(0)\ns_barrier')
    flush(1)
    stamp(a, 8)
    if OPT['stamps']:
        a('s_waitcnt vmcnt(0)')
        stamp(a, 'end')
        stamps_out(a, len(NAMES['B'])+1, T+1, {0: 0, 1: 13, 4: 14, 9: 15})
    calib(a)
    a('s_endpgm')
    a.label('L_B_end')
    a.reset_counters()

HEADER = open('concat_heads__spectral_gfnet__ssm_conv_s4__prompt.s.ref').read().split('; Override launch')[0]

def build(**opt):
    OPT.update(opt)
    a = Asm()
    stamp(a, 0)
    if OPT.get('calib'): a('s_memrealtime s[96:97]')
    a(f's_cmp_ge_u32 s2, {128 if OPT.get("noB") else 256}\ns_cbranch_scc1 L_exit')
    if OPT.get('noA'): a('s_cmp_lt_u32 s2, 128\ns_cbranch_scc1 L_exit')
    a('s_cmp_ge_u32 s2, 128\ns_cbranch_scc1 L_B')
    gen_A(a)
    gen_B(a)
    a.label('L_exit')
    a('s_endpgm')
    a.pad()
    s = HEADER + f'; stamps A={",".join(NAMES["A"])} B={",".join(NAMES["B"])}\n' * bool(OPT['stamps']) + f'; @launch grid=(256,1,1) block=(512,1,1) lds={LDS_BYTES}\n'
    s += f'''.amdgcn_target "amdgcn-amd-amdhsa--gfx950"
.text
.globl {KN}
.p2align 8
.type {KN},@function
{KN}:
''' + a.text() + f'''.section .rodata,"a"
.p2align 6
.amdhsa_kernel {KN}
  .amdhsa_next_free_vgpr 256
  .amdhsa_next_free_sgpr 102
  .amdhsa_accum_offset 256
  .amdhsa_group_segment_fixed_size 0
  .amdhsa_kernarg_size 120
  .amdhsa_user_sgpr_count 2
  .amdhsa_user_sgpr_kernarg_segment_ptr 1
  .amdhsa_system_sgpr_workgroup_id_x 1
.end_amdhsa_kernel
'''
    return s, a

if __name__ == '__main__':
    out = sys.argv[1] if len(sys.argv) > 1 else 'k.s'
    opt = {}
    for x in sys.argv[2:]:
        k, _, v = x.partition('=')
        opt[k] = int(v) if v else True
    s, a = build(**opt)
    open(out, 'w').write(s)
    import subprocess
    sys.path.insert(0, 'cdna_kernels')
    import cdna_launch as cl
    open('_h.s', 'w').write(cl.with_harness_metadata(s, KN, 15, launch_lists=True))
    r = subprocess.run(['clang', '-x', 'assembler', '-target', 'amdgcn-amd-amdhsa', '-mcpu=gfx950', '_h.s', '-o', '_h.co'], capture_output=True, text=True)
    if r.returncode: print(r.stderr[:1500]); sys.exit(1)
    p = cl.address_register_problem('_h.co', KN)
    if p: print(p); sys.exit(1)
    print('instructions', sum(1 for x in a.ins if x.kind not in ('label','dir')), 'nops', a.nops)
```

```python
import sys, struct, math, itertools
from asmlib import Asm

KN = 'concat_heads__spectral_gfnet__ssm_conv_s4__prompt_kernel'
def fh(x): return '0x%08x' % struct.unpack('<I', struct.pack('<f', x))[0]
def vr(b, n): return f'v[{b}:{b+n-1}]'

OPT = dict(stamps=False)

Z1 = 0; Z2 = 4 << 20; FL1 = 8 << 20; FL2 = FL1 + 65536; GEN = FL1 + 131072; STAMP = 16 << 20
FLS = 256
WS_SIZE = 268435456
LDS_BYTES = 154688

MF16 = 'v_mfma_f32_16x16x32_bf16'
MF32 = 'v_mfma_f32_32x32x16_bf16'

sW = 3
sX, sWR, sWI, sOUT, sWS = 8, 12, 16, 20, 24
def srd(b): return f's[{b}:{b+3}]'
sT = 28
sNONCE = 40; sA = 41; sB = 42; sBP = 43; sDQ = 44; sSWZ = 45; sSPEC = 46; sM = 48
sCNT = 52; sMSK = 54
sWO = 56; sKB = 58; s2M = 59
sST = 60

NAMES = {'A': [], 'B': []}
ROLE = ['A']
def stamp(a, k, lvl=0):
    if not OPT['stamps']: return
    if lvl and OPT.get('detail') != lvl: return
    if not lvl and OPT.get('detail') and k not in (0, 'end'): return
    if k == 0: i = 0
    else:
        NAMES[ROLE[0]].append(str(k)); i = len(NAMES[ROLE[0]])
    assert i < 16
    a(f'{"s_memtime" if OPT.get("cyc") else "s_memrealtime"} s[{sST+2*i}:{sST+2*i+1}]')

def stamps_out(a, n, vt, dbgmap=None):
    if not OPT['stamps']: return
    if OPT.get('dbg'):
        a('s_load_dwordx2 s[28:29], s[0:1], 104\ns_mov_b32 s30, 256\ns_mov_b32 s31, 0x20000\ns_waitcnt lgkmcnt(0)')
        a(f's_not_b32 s{sST}, s{sST}')
        a('s_mov_b64 exec, 1')
        a(f's_cmp_lg_u32 s{sW}, 0')
        with a.cond('s_cbranch_scc1'):
            for k, slot in dbgmap.items():
                a(f'v_mov_b32 v{vt+1}, s{sST+2*k}')
                a(f'buffer_atomic_umax v{vt+1}, off, s[28:31], 0 offset:{4*slot}')
        a('s_mov_b64 exec, -1')
        return
    a('s_waitcnt lgkmcnt(0)')
    a(f's_lshl_b32 s{sT}, s2, 3\ns_add_u32 s{sT}, s{sT}, s{sW}\ns_lshl_b32 s{sT}, s{sT}, 6\ns_add_u32 s{sT}, s{sT}, {STAMP}')
    a(f'v_mov_b32 v{vt}, s{sT}')
    a('s_mov_b64 exec, 1')
    for k in range(n):
        a(f'v_mov_b32 v{vt+1}, s{sST+2*k}')
        a(f'buffer_store_dword v{vt+1}, v{vt}, {srd(sWS)}, 0 offen offset:{4*k}')
    a('s_mov_b64 exec, -1')

def calib(a):
    n = OPT.get('calib')
    if not n: return
    lab = a.newlab('Lcal')
    a('s_waitcnt vmcnt(0) lgkmcnt(0)')
    a.label(lab)
    a(f'''s_memrealtime s[30:31]
    s_waitcnt lgkmcnt(0)
    s_sub_u32 s30, s30, s96
    s_cmp_lt_u32 s30, {n}
    s_cbranch_scc1 {lab}''')

def trig4(a, args, tmp):
    for i, r in enumerate(args):
        a(f'v_cos_f32 v{tmp+2*i}, v{r}')
        a(f'v_sin_f32 v{tmp+2*i+1}, v{r}')

def args4(a, dst, vx, vbase, step):
    for m in (3, 2, 1):
        a(f'v_fmamk_f32 v{dst+m}, v{vx}, {fh(step*m)}, v{vbase}')
    if vbase != dst: a(f'v_mov_b32 v{dst}, v{vbase}')

def matrix(a, re, im, args, tmp):
    trig4(a, args, tmp)
    for m in range(len(args)):
        a(f'v_cvt_pk_bf16_f32 v{re+m}, v{tmp+2*m}, v{tmp+2*m+1}')
        a(f'v_cvt_pk_bf16_f32 v{im+m}, -v{tmp+2*m+1}, v{tmp+2*m}')

DG = 1.00282
sSEL = 47
def pack(a, d, lo, hi):
    a(f'v_perm_b32 v{d}, v{hi}, v{lo}, s{sSEL}')

def scale(a, base, n, g):
    for k in range(n): a(f'v_mul_f32 v{base+k}, {fh(g)}, v{base+k}')

def twiddle(a, dst, re, im, tw, tmp):
    for r in range(4):
        a(f'v_mul_f32 v{tmp+2*r}, v{re+r}, v{tw+2*r}')
        a(f'v_mul_f32 v{tmp+2*r+1}, v{im+r}, v{tw+2*r}')
    for r in range(4):
        a(f'v_fmac_f32 v{tmp+2*r}, v{im+r}, v{tw+2*r+1}')
        a(f'v_fma_f32 v{tmp+2*r+1}, -v{re+r}, v{tw+2*r+1}, v{tmp+2*r+1}')
    for r in range(4):
        pack(a, dst+r, tmp+2*r, tmp+2*r+1)

def poll(a, base, va, vf):
    lab = a.newlab('Lpoll'); done = a.newlab('Lpolldone')
    a(f's_mov_b32 s{sCNT}, 100000')
    a(f's_mov_b32 s{sT}, {base}')
    a('s_mov_b64 exec, 0xffff')
    a.label(lab)
    a(f'buffer_load_dword v{vf}, v{va}, {srd(sWS)}, s{sT} offen sc1')
    a('s_waitcnt vmcnt(0)')
    a(f'v_cmp_ne_u32 vcc, s{sNONCE}, v{vf}')
    a('s_and_b64 exec, exec, vcc')
    a(f's_cbranch_scc0 {done}')
    a(f's_sub_u32 s{sCNT}, s{sCNT}, 1')
    a(f's_cmp_lg_u32 s{sCNT}, 0')
    a(f's_cbranch_scc1 {lab}')
    a.label(done)
    a('s_mov_b64 exec, -1')

def prefetch_code(a, start, end, vt):
    a(f's_getpc_b64 s[{sT}:{sT+1}]')
    lab = a.newlab('Lpc'); a.label(lab)
    a(f'v_lshlrev_b32 v{vt}, 6, v0')
    a(f'v_min_u32 v{vt}, ({end}-{lab}-4), v{vt}')
    a(f'global_load_dword v{vt+1}, v{vt}, s[{sT}:{sT+1}]')

def gen_A(a):
    vJ, vG, vL = 1, 2, 3
    T = 4
    L, X, ACC = 16, 32, 48
    C1 = 80; MR = C1; MD1 = C1+8; TW = C1+16; MD2 = C1+32
    C2 = 136; M1 = C2; T1 = C2+8; M8 = C2+16; T1i = C2+24; M1i = C2+32
    CO = 176
    AD = 224
    aX, aE1w, aE1r, aZ, aFl, aNon, aDma, aI2, aWw, aWr, aO2w, aO2r, aZ2, aW0, aW1 = \
        AD, AD+1, AD+2, AD+3, AD+4, AD+5, AD+6, AD+8, AD+12, AD+13, AD+15, AD+16, AD+17, AD+18, AD+19
    aSp = AD+20
    fJ, fG = AD+24, AD+25
    TT = AD+26
    E1 = 0; I2 = 36864; O2 = I2 + 32768 + 64; WSL = O2 + 34816; MIR = WSL + 33280; SPL = MIR + 1024; NON = SPL + 2048; E3 = 0
    assert NON + 16 <= LDS_BYTES
    acc = lambda tile, part: ACC + 8*tile + 4*part

    a.label('L_A')
    prefetch_code(a, 'L_A', 'L_A_end', TT)
    a(f'''s_load_dwordx2 s[{sX}:{sX+1}], s[0:1], 0
    s_load_dwordx2 s[{sWS}:{sWS+1}], s[0:1], 112
    s_load_dwordx2 s[{sWR}:{sWR+1}], s[0:1], 8
    s_load_dwordx2 s[{sWI}:{sWI+1}], s[0:1], 16
    s_load_dwordx2 s[{sOUT}:{sOUT+1}], s[0:1], 96
    s_mov_b32 s{sSEL}, 0x07060302
    s_mov_b32 s{sX+2}, 4194304
    s_mov_b32 s{sX+3}, 0x20000
    s_mov_b32 s{sWS+2}, {WS_SIZE}
    s_mov_b32 s{sWS+3}, 0x20000
    s_mov_b32 s{sWR+2}, 2101248
    s_mov_b32 s{sWR+3}, 0x20000
    s_mov_b32 s{sWI+2}, 2101248
    s_mov_b32 s{sWI+3}, 0x20000
    s_mov_b32 s{sOUT+2}, 8388608
    s_mov_b32 s{sOUT+3}, 0x20000
    v_lshrrev_b32 v{T}, 6, v0
    v_and_b32 v{vL}, 63, v0
    v_readfirstlane_b32 s{sW}, v{T}
    v_and_b32 v{vJ}, 15, v0
    v_bfe_u32 v{vG}, v0, 4, 2
    s_lshl_b32 s{sM}, s2, 11
    s_add_u32 s{sM+1}, s{sM}, 262144
    s_add_u32 s{sM+2}, s{sM}, 524288
    s_add_u32 s{sM+3}, s{sM}, 786432
    v_lshlrev_b32 v{aX}, 20, v{vG}
    v_lshl_or_b32 v{aX}, v{vJ}, 3, v{aX}
    v_lshl_or_b32 v{aX}, v{T}, 8, v{aX}''')
    xsrc = {}
    for m in range(4):
        for nb in range(2):
            r = L + 4*m + 2*nb
            xsrc[m, nb] = r
            a(f'buffer_load_dwordx2 {vr(r,2)}, v{aX}, {srd(sX)}, s{sM+m} offen offset:{128*nb}')
    stamp(a, 1)
    stamp(a, 'xiss', 1)
    if OPT.get('touch'):
        a(f's_cmp_lg_u32 s{sW}, 7')
        with a.cond('s_cbranch_scc1'):
            a(f'''v_lshlrev_b32 v{TT}, 17, v{vL}
            buffer_load_dword v{TT+5}, v{TT}, {srd(sWS)}, 0 offen sc1
            buffer_load_dword v{TT+5}, v{TT}, {srd(sOUT)}, 0 offen sc1''')
    a(f'''s_and_b32 s{sA}, s2, 7
    s_lshr_b32 s{sB}, s2, 3
    s_lshl_b32 s{sBP}, s{sA}, 12
    s_mov_b32 s{sDQ}, 2048
    s_mov_b32 s{sSPEC}, 0
    s_cmp_lg_u32 s{sA}, 0''')
    with a.cond('s_cbranch_scc1'):
        a(f'''s_and_b32 s{sA}, s{sB}, 8
        s_lshl_b32 s{sBP}, s{sA}, 8
        s_and_b32 s{sB}, s{sB}, 7
        s_mov_b32 s{sDQ}, 1024
        s_mov_b32 s{sSPEC}, 1''')
    a(f'''s_lshl_b32 s{sT}, s{sB}, 7
    s_add_u32 s{sBP}, s{sBP}, s{sT}''')
    a(f'v_cvt_f32_u32 v{fJ}, v{vJ}\nv_cvt_f32_u32 v{fG}, v{vG}')
    a(f'''v_lshrrev_b32 v{T}, 1, v{vJ}
    v_cmp_eq_u32 vcc, 1, v{vJ}
    v_cndmask_b32 v{T}, v{T}, 8, vcc
    v_cvt_f32_u32 v{T}, v{T}
    v_and_b32 v{T+1}, 1, v{vJ}
    v_lshlrev_b32 v{T+1}, 31, v{T+1}
    v_cndmask_b32 v{TT+2}, v{T+1}, 0, vcc
    v_mul_f32 v{T+1}, 0x3e800000, v{fG}
    v_mul_f32 v{X}, v{T}, v{T+1}''')
    args4(a, X, T, X, 1/16)
    matrix(a, MR, MR+4, [X+m for m in range(4)], ACC)
    for m in range(8): a(f'v_xor_b32 v{MR+m}, v{TT+2}, v{MR+m}')
    a(f'v_mul_f32 v{X}, v{fJ}, v{T+1}')
    args4(a, X, fJ, X, 1/16)
    matrix(a, MD1, MD1+4, [X+m for m in range(4)], ACC)
    a(f'v_mul_f32 v{T+2}, {fh(1/64)}, v{fG}\nv_mul_f32 v{X}, v{fJ}, v{T+2}')
    a(f'v_fmamk_f32 v{X+4}, v{fJ}, {fh(1/512)}, v{X}')
    args4(a, X, fJ, X, 2/512); args4(a, X+4, fJ, X+4, 2/512)
    trig4(a, [X+m for m in range(8)], TW)
    scale(a, TW, 16, DG*DG)
    a(f'v_mul_f32 v{X}, v{fJ}, v{T+1}')
    a(f'v_fmamk_f32 v{X+4}, v{fJ}, {fh(1/32)}, v{X}')
    args4(a, X, fJ, X, 2/32); args4(a, X+4, fJ, X+4, 2/32)
    matrix(a, MD2, MD2+4, [X+m for m in range(4)], ACC)
    matrix(a, MD2+8, MD2+12, [X+4+m for m in range(4)], ACC+8)
    for m in range(8): a(f'v_xor_b32 v{MD2+16+m}, 0x80008000, v{MD2+8+m}')
    a(f'''v_mul_u32_u24 v{T}, 72, v{vJ}
    s_lshl_b32 s{sT}, s{sW}, 3
    v_mul_u32_u24 v{aE1w}, 9216, v{vG}
    v_add3_u32 v{aE1w}, v{aE1w}, v{T}, s{sT}
    s_mul_i32 s{sT}, s{sW}, 4608
    v_lshl_add_u32 v{aE1r}, v{vG}, 4, v{T}
    v_add_u32 v{aE1r}, s{sT}, v{aE1r}
    s_lshl_b32 s{sT}, s{sW}, 12
    s_lshl_b32 s{sT+1}, s2, 15
    s_add_u32 s{sT}, s{sT}, s{sT+1}
    v_lshl_add_u32 v{aZ}, v{vL}, 4, s{sT}''')
    aS1, aBp, aSx = TT+3, TT+4, TT+5
    a(f'''v_sub_u32 v{T}, 16, v{vJ}
    v_and_b32 v{T}, 15, v{T}
    v_lshlrev_b32 v{T}, 4, v{T}
    v_sub_u32 v{T+1}, 3, v{vG}
    v_lshl_add_u32 v{T}, v{T+1}, 8, v{T}
    v_add_u32 v{aS1}, s{sT+1}, v{T}
    v_add_u32 v{T}, 16, v{vL}
    v_and_b32 v{T}, 63, v{T}
    v_lshlrev_b32 v{aBp}, 2, v{T}''')
    for r in range(4): a(f'v_mov_b32 v{aSp+r}, 0')
    SC1 = OPT.get('z1scat', 1)
    if SC1:
        a(f'''s_lshl_b32 s{sT}, s2, 8
        s_lshl_b32 s{sT+1}, s{sW}, 15
        s_add_u32 s{sT+1}, s{sT+1}, s{sT}
        v_lshrrev_b32 v{T}, 3, v{vL}
        v_and_b32 v{T+1}, 7, v{vL}
        v_lshlrev_b32 v{T+1}, 4, v{T+1}
        v_lshl_add_u32 v{T}, v{T}, 18, v{T+1}
        v_add_u32 v{aZ}, s{sT+1}, v{T}
        v_sub_u32 v{T}, 16, v{vJ}
        v_and_b32 v{T+1}, 7, v{T}
        v_bfe_u32 v{T}, v{T}, 3, 1
        v_sub_u32 v{T+2}, 3, v{vG}
        v_lshl_add_u32 v{T}, v{T+2}, 1, v{T}
        v_lshlrev_b32 v{T+1}, 4, v{T+1}
        v_lshl_add_u32 v{T}, v{T}, 18, v{T+1}
        v_add_u32 v{aS1}, s{sT}, v{T}
        s_mov_b32 s{s2M}, 0x200000''')
    WL = CO+32
    a(f'''v_lshrrev_b32 v{T}, 2, v0
    v_lshl_add_u32 v{T}, v{T}, 4, s{sA}
    v_sub_u32 v{T+1}, 0, v{T}
    v_and_b32 v{T+1}, 0x7ff, v{T+1}
    v_and_b32 v{T+2}, 3, v0
    v_lshlrev_b32 v{T+2}, 5, v{T+2}
    v_sub_u32 v{T+3}, 96, v{T+2}
    s_movk_i32 s{sT}, 1026
    v_mad_u32_u24 v{aW0}, v{T}, s{sT}, v{T+2}
    v_mad_u32_u24 v{aW1}, v{T+1}, s{sT}, v{T+3}
    s_lshr_b32 s{sKB}, s{sB}, 1
    s_lshl_b32 s{sKB}, s{sKB}, 3
    s_and_b32 s{sT}, s{sB}, 1
    s_add_u32 s{sKB}, s{sKB}, s{sT}
    s_lshl_b32 s{sKB}, s{sKB}, 3
    s_lshl_b32 s{sWO}, s{sKB}, 1
    s_sub_u32 s{sWO+1}, {1010-96}, s{sWO}''')
    SX = CO+30
    a(f'''v_and_b32 v{T+2}, 3, v0
    v_mul_u32_u24 v{T}, 1026, v{T}
    v_mul_u32_u24 v{T+1}, 1026, v{T+1}
    v_lshlrev_b32 v{T+3}, 9, v{T+2}
    v_sub_u32 v{T+3}, 1536, v{T+3}
    v_add_u32 v{T}, v{T}, v{T+3}
    v_cmp_eq_u32 vcc, 0, v{T+2}
    s_add_u32 s{sT}, s{sSPEC}, 2
    s_cmp_eq_u32 s{sB}, 0
    s_cselect_b32 s{sT}, s{sT}, 0
    v_cndmask_b32 v{T}, v{T}, v{T+1}, vcc
    v_cmp_gt_u32 vcc, s{sT}, v{T+2}
    v_mov_b32 v{T+1}, 0x7ffffff0
    v_cndmask_b32 v{aSx}, v{T+1}, v{T}, vcc''')
    WPOS = [int(c) for c in str(OPT.get("wpos", 1266)).zfill(5)]
    def wat(p):
        for q in range(4):
            if WPOS[q] == p:
                a(f'buffer_load_dwordx4 {vr(WL+4*q,4)}, v{(aW0,aW1)[q>>1]}, {srd((sWR,sWI)[q&1])}, s{sWO+(q>>1)} offen')
        if WPOS[4] == p:
            a(f'buffer_load_ushort v{SX}, v{aSx}, {srd(sWR)}, 0 offen')
            a(f'buffer_load_ushort v{SX+1}, v{aSx}, {srd(sWI)}, 0 offen')
    wat(0)
    stamp(a, 'const', 1)
    xt = lambda nb, tp: X + 4*(2*tp + nb)
    for tp in range(2):
        for nb in range(2):
            for h in range(2):
                a(f'v_pk_mov_b32 {vr(xt(nb,tp)+2*h,2)}, {vr(xsrc[2*h,nb],2)}, {vr(xsrc[2*h+1,nb],2)} op_sel:[{tp},{tp}]')
    stamp(a, 2)
    stamp(a, 'xland', 1)
    a(f's_cmp_lg_u32 s{sW}, 0')
    with a.cond('s_cbranch_scc1'):
        a(f'''s_mov_b32 s{sT}, {GEN}
        s_mov_b64 exec, 1
        buffer_load_dword v{aNon}, off, {srd(sWS)}, s{sT} sc1
        s_mov_b64 exec, -1''')
    wat(1)
    for tp in range(2):
        for nb in range(2):
            for part in range(2):
                a(f'{MF16} {vr(acc(2*tp+nb,part),4)}, {vr(MR+4*part,4)}, {vr(xt(nb,tp),4)}, 0')
    for tp in range(2):
        for r in range(4):
            for nb in range(2):
                a(f'v_cvt_pk_bf16_f32 v{L+8*tp+2*r+nb}, v{acc(2*tp+nb,0)+r}, v{acc(2*tp+nb,1)+r}')
            a(f'ds_write_b64 v{aE1w}, {vr(L+8*tp+2*r,2)} offset:{E1+2304*r+1152*tp}')
    wat(2)
    stamp(a, 'wr', 1)
    a('s_waitcnt lgkmcnt(0)')
    stamp(a, 'wrdone', 1)
    a('s_barrier')
    stamp(a, 'bar', 1)
    for wh in range(2):
        for t in range(2):
            for h in range(2):
                a(f'ds_read_b64 {vr(X+8*wh+4*t+2*h,2)}, v{aE1r} offset:{E1+2304*wh+1152*t+8*h}')
    for tile in range(4):
        for part in range(2):
            a(f'{MF16} {vr(acc(tile,part),4)}, {vr(X+4*tile,4)}, {vr(MD1+4*part,4)}, 0')
    wat(3)
    stamp(a, 'd1iss', 1)
    for tile in range(4):
        twiddle(a, X+4*tile, acc(tile,0), acc(tile,1), TW+8*(tile&1), T)
    stamp(a, 'tw', 1)
    wat(4)
    for wh in range(2):
        for N in range(2):
            for part in range(2):
                a(f'{MF16} {vr(acc(2*wh+N,part),4)}, {vr(MD2+4*part,4)}, {vr(X+8*wh,4)}, 0')
        for N in range(2):
            for part in range(2):
                a(f'{MF16} {vr(acc(2*wh+N,part),4)}, {vr(MD2+8+8*N+4*part,4)}, {vr(X+8*wh+4,4)}, {vr(acc(2*wh+N,part),4)}')
    STF = {0: 'sc1', 1: 'sc0 sc1', 2: 'sc1 nt'}[OPT.get('stf', 0)]
    def z1_store(wh, N, w0=False):
        for r in range(4): pack(a, L+8*wh+4*N+r, acc(2*wh+N,0)+r, acc(2*wh+N,1)+r)
        so, off = '0', 2048*wh+1024*N
        if SC1:
            so, off = (f's{s2M}' if N else '0'), 128*wh
            if w0: so, off = f's{s2M}', 0
        a(f'buffer_store_dwordx4 {vr(L+8*wh+4*N,4)}, v{aZ}, {srd(sWS)}, {so} offen offset:{off} {STF}')
        a.tag_vm('z1')
    z1_store(0, 0)
    stamp(a, 'st0', 1)
    def norm1():
        z1_store(0, 1); z1_store(1, 0); z1_store(1, 1)
    def spec1():
        a(f'v_cmp_eq_u32 vcc, 0, v{vJ}')
        for wh in range(2):
            R = T + 5*wh
            for r in range(4):
                pack(a, R+r, acc(2*wh+1,0)+r, acc(2*wh+1,1)+r)
                a(f'v_xor_b32 v{R+r}, 0x80000000, v{R+r}')
                if r == 0: a(f'ds_bpermute_b32 v{R+4}, v{aBp}, v{R}')
            if wh == 0: z1_store(1, 0, True)
        for wh in range(2):
            R = T + 5*wh; O = L+8*wh+4
            for k in (3, 2, 1, 0):
                a(f'v_cndmask_b32 v{O+k}, v{R+3-k}, v{R+4-k}, vcc')
            so, off = '0', 2048*wh+1024
            if SC1: so, off = (f's{s2M}' if wh else '0'), 128
            a(f'buffer_store_dwordx4 {vr(O,4)}, v{aS1}, {srd(sWS)}, {so} offen offset:{off} {STF}')
            a.tag_vm('z1')
    a(f's_cmp_eq_u32 s{sW}, {99 if OPT.get("nospec") else 0}')
    a.ifelse('s_cbranch_scc1', norm1, spec1)
    stamp(a, 3)
    stamp(a, 'st3', 1)
    wat(5)
    if 6 in WPOS: a('s_barrier')
    wat(6)
    stamp(a, 'wiss', 1)
    a(f's_cmp_lg_u32 s{sW}, 0')
    with a.cond('s_cbranch_scc1'):
        a(f'''v_add_u32 v{aNon}, 0x9e3779b9, v{aNon}
        v_mov_b32 v{T}, {NON}
        s_mov_b64 exec, 1
        ds_write_b32 v{T}, v{aNon}
        s_mov_b64 exec, -1
        s_mul_i32 s{sT}, s2, {FLS}
        s_add_u32 s{sT}, s{sT}, {FL1}
        s_waitcnt lgkmcnt(0)''')
    a.wait_vm_tag('z1')
    stamp(a, 'drain', 1)
    a('s_barrier')
    a(f's_cmp_lg_u32 s{sW}, 0')
    with a.cond('s_cbranch_scc1'):
        a(f'''s_mov_b64 exec, 1
        buffer_store_dword v{aNon}, off, {srd(sWS)}, s{sT} sc1
        s_mov_b64 exec, -1''')
    stamp(a, 4)
    stamp(a, 'bar2', 1)
    wat(7)
    a(f'v_mov_b32 v{aNon}, {NON}\nds_read_b32 v{aNon}, v{aNon}')
    SP = C1+16
    fK, fS, fF = T, T+1, T+2
    AR = L
    a(f'''v_cvt_f32_u32 v{fF}, s{sA}
    v_mul_f32 v{fF}, {fh(1/16)}, v{fF}
    v_add_f32 v{fK}, v{fJ}, v{fF}
    v_and_b32 v{fS}, 1, v{vG}
    v_lshlrev_b32 v{fS}, 2, v{fS}
    v_cvt_f32_u32 v{fS}, v{fS}
    v_mul_f32 v{T+3}, 0x3e800000, v{fG}
    v_mul_f32 v{AR}, v{fK}, v{T+3}''')
    args4(a, AR, fK, AR, 1/16)
    matrix(a, M1, M1+4, [AR+m for m in range(4)], ACC)
    a(f'v_mul_f32 v{T+3}, {fh(1/128)}, v{fS}\nv_mul_f32 v{AR}, v{fK}, v{T+3}')
    args4(a, AR, fK, AR, 1/128)
    trig4(a, [AR+m for m in range(4)], T1)
    scale(a, T1, 8, DG)
    a(f'''v_and_b32 v{T+4}, 7, v{vJ}
    v_cvt_f32_u32 v{T+4}, v{T+4}
    v_mul_f32 v{T+3}, 0x3e000000, v{fS}
    v_mul_f32 v{AR}, v{T+4}, v{T+3}''')
    args4(a, AR, T+4, AR, 1/8)
    matrix(a, M8, M8+4, [AR+m for m in range(4)], ACC)
    a(f'''v_lshrrev_b32 v{T+5}, 3, v{vJ}
    v_lshrrev_b32 v{T+6}, 1, v{vG}
    v_cmp_eq_u32 vcc, v{T+5}, v{T+6}''')
    for m in range(8): a(f'v_cndmask_b32 v{M8+m}, 0, v{M8+m}, vcc')
    a(f'''v_fmamk_f32 v{T+3}, v{fG}, 4.0, v{fF}
    v_mul_f32 v{T+7}, {fh(1/128)}, v{T+3}
    v_mul_f32 v{AR}, v{T+4}, v{T+7}'''.replace('4.0', fh(4.0)))
    args4(a, AR, T+4, AR, 1/128)
    trig4(a, [AR+m for m in range(4)], T1i)
    scale(a, T1i, 8, DG*DG)
    a(f'v_mul_f32 v{T+7}, {fh(1/16)}, v{T+3}\nv_mul_f32 v{AR}, v{fJ}, v{T+7}')
    args4(a, AR, fJ, AR, 1/16)
    matrix(a, M1i, M1i+4, [AR+m for m in range(4)], ACC)
    a(f'''v_bfe_u32 v{T}, v{vL}, 3, 1
    v_mul_u32_u24 v{T}, s{sDQ}, v{T}
    v_lshl_add_u32 v{T}, v{vG}, 15, v{T}
    v_add_u32 v{T}, s{sBP}, v{T}
    v_and_b32 v{T+1}, 7, v{vL}
    v_lshl_add_u32 v{aZ2}, v{T+1}, 4, v{T}''')
    if SC1: a(f'v_and_b32 v{T}, 56, v{vL}\nv_lshlrev_b32 v{T}, 4, v{T}')
    a(f'''v_xor_b32 v{T+1}, v{T+1}, v{vG}
    v_lshl_add_u32 v{aDma}, v{T+1}, 4, v{T}
    v_xor_b32 v{T+1}, 4, v{T+1}
    v_lshl_add_u32 v{aDma+1}, v{T+1}, 4, v{T}''')
    a(f'''v_and_b32 v{T}, 7, v{vJ}
    v_xor_b32 v{T+1}, s{sW}, v{T}
    v_lshlrev_b32 v{T+1}, 4, v{T+1}
    v_lshl_or_b32 v{T+1}, v{T}, 8, v{T+1}
    v_lshl_or_b32 v{T+1}, v{T+5}, 3, v{T+1}
    v_mul_u32_u24 v{T+2}, 8196, v{vG}
    v_add_u32 v{T+1}, v{T+1}, v{T+2}
    v_add_u32 v{aI2}, {I2}, v{T+1}
    v_add_u32 v{aI2+1}, {I2+128}, v{T+1}
    v_add_u32 v{aI2+2}, {I2+4}, v{T+1}
    v_add_u32 v{aI2+3}, {I2+132}, v{T+1}''')
    a(f'''s_lshr_b32 s{sT}, s{sW}, 2
    s_lshl_b32 s{sT}, s{sT}, 4
    s_and_b32 s{sT+1}, s{sW}, 3
    s_lshl_b32 s{sT+1}, s{sT+1}, 5
    s_add_u32 s{sT}, s{sT}, s{sT+1}
    s_lshl_b32 s{sT}, s{sT}, 2
    s_add_u32 s{sT}, s{sT}, {WSL}
    v_and_b32 v{T}, 3, v{vL}
    v_mul_u32_u24 v{T}, 2080, v{T}
    v_and_b32 v{T+1}, 60, v{vL}
    v_add3_u32 v{aWw}, v{T}, v{T+1}, s{sT}
    v_and_b32 v{T}, 1, v{vG}
    v_lshl_add_u32 v{T}, v{T}, 4, v{vJ}
    v_lshlrev_b32 v{T}, 2, v{T}
    v_mul_u32_u24 v{T+1}, {8*520}, v{T+6}
    v_add_u32 v{T+1}, v{T+1}, v{T}
    s_lshr_b32 s{sT}, s{sW}, 1
    s_mul_i32 s{sT}, s{sT}, 520
    s_and_b32 s{sT+1}, s{sW}, 1
    s_lshl_b32 s{sT+1}, s{sT+1}, 1
    s_add_u32 s{sT}, s{sT}, s{sT+1}
    s_add_u32 s{sT+1}, s{sT}, {WSL}
    s_sub_u32 s{sT+2}, {WSL+3*520+2}, s{sT}
    v_add_u32 v{aWr}, s{sT+1}, v{T+1}
    v_add_u32 v{aWr+1}, s{sT+2}, v{T+1}''')
    a(f'''v_and_b32 v{T}, 7, v{vJ}
    v_lshl_add_u32 v{T}, v{vG}, 5, v{T}
    v_mul_u32_u24 v{T}, 272, v{T}
    v_lshl_add_u32 v{T}, v{T+5}, 3, v{T}
    s_lshl_b32 s{sT}, s{sW}, 4
    s_add_u32 s{sT}, s{sT}, {O2}
    v_add_u32 v{aO2w}, s{sT}, v{T}
    v_mul_u32_u24 v{T}, 272, v{vG}
    v_lshl_add_u32 v{T}, v{vJ}, 4, v{T}
    s_mul_i32 s{sT}, s{sW}, {16*272}
    s_add_u32 s{sT}, s{sT}, {O2}
    v_add_u32 v{aO2r}, s{sT}, v{T}
    s_lshl_b32 s{sT}, s{sW}, 4
    v_add_u32 v{T}, s{sT}, v{vL}
    v_mul_u32_u24 v{aFl}, {FLS}, v{T}
    v_readfirstlane_b32 s{sNONCE}, v{aNon}''')
    SC = 1.0/(2048*512)/2*DG/1.00268
    TH = C1+40
    a(f'''s_add_u32 s{sT}, s{sKB}, s{sW}
    v_lshl_add_u32 v{T}, v{T+6}, 5, s{sT}
    v_cvt_f32_u32 v{T}, v{T}
    v_mul_f32 v{T}, {fh(1/1024)}, v{T}
    v_add_f32 v{T+1}, {fh(16/1024)}, v{T}
    v_sin_f32 v{TH}, v{T}
    v_cos_f32 v{TH+1}, v{T}
    v_sin_f32 v{TH+2}, v{T+1}
    v_cos_f32 v{TH+3}, v{T+1}''')
    for k in range(4): a(f'v_mul_f32 v{TH+k}, {fh(SC)}, v{TH+k}')
    for q in range(4):
        for i in range(4):
            a(f'ds_write_b32 v{aWw}, v{WL+4*q+i} offset:{4*(2080*q+130*i)}')
    a(f'''v_lshl_or_b32 v{SX}, v{SX+1}, 16, v{SX}
    v_and_b32 v{T}, 3, v{vL}
    v_mul_u32_u24 v{T}, {2080-512}, v{T}
    v_sub_u32 v{T}, v{aWw}, v{T}
    ds_write_b32 v{T}, v{SX} offset:{SPL-WSL}''')
    stamp(a, 'wst', 2)
    a(f'''s_lshl_b32 s{sT+1}, s{sW}, 12
    s_lshl_b32 s{sT+2}, s{sW}, 1
    s_and_b32 s{sT+2}, s{sT+2}, 12''')
    if SC1: a(f's_lshl_b32 s{sT+3}, s2, 15\ns_add_u32 s{sT+3}, s{sT+3}, s{sT+1}')
    else: a(f's_lshl_b32 s{sT+3}, s{sW}, 19')
    a(f'''s_add_u32 s{sT+1}, s{sT+1}, s{sT+2}
    s_add_u32 s{sT+1}, s{sT+1}, {I2}
    s_mov_b32 m0, s{sT+1}''')
    poll(a, FL1, aFl, T)
    stamp(a, 5)
    stamp(a, 'poll', 2)
    for q in range(4):
        a(f'buffer_load_dwordx4 v{aDma+(q&1)}, {srd(sWS)}, s{sT+3} offen sc1 lds')
        a.tag_vm('dma')
        if q < 3: a(f's_add_u32 s{sT+3}, s{sT+3}, {1024 if SC1 else 4*32768}\ns_add_u32 m0, m0, 1024')
    a('s_waitcnt lgkmcnt(0)\ns_barrier')
    stamp(a, 'barC', 2)
    a(f's_or_b32 s{sT}, s{sW}, s2')
    with a.cond('s_cbranch_scc1'):
        a(f'''s_mov_b32 s{sT}, {GEN}
        s_mov_b64 exec, 1
        buffer_store_dword v{aNon}, off, {srd(sWS)}, s{sT} sc1
        s_mov_b64 exec, -1''')
    raw = lambda t, r, q: ACC + 16*t + 4*r + q
    for t in range(2):
        for r in range(4):
            for q in range(4):
                a(f'ds_read_u16_d16_hi v{raw(t,r,q)}, v{aWr+(q>>1)} offset:{4*(2080*q+520*t+32*r)}')
    a(f's_or_b32 s{sT}, s{sW}, s{sB}')
    with a.cond('s_cbranch_scc1'):
        a(f'''v_and_b32 v{T}, 31, v{vL}
        v_lshlrev_b32 v{T}, 2, v{T}
        v_add_u32 v{T}, {SPL}, v{T}''')
        for r in range(4):
            for k in range(3): a(f'ds_read_b32 v{SP+6*r+2*k+1}, v{T} offset:{512*k+128*r}')
        for r in range(4):
            for k in range(3):
                a(f'v_lshlrev_b32 v{SP+6*r+2*k}, 16, v{SP+6*r+2*k+1}\nv_and_b32 v{SP+6*r+2*k+1}, 0xffff0000, v{SP+6*r+2*k+1}')
        a('s_mov_b32 exec_hi, 0')
        for r in range(4):
            a(f'''v_add_f32 v{raw(0,r,0)}, v{raw(0,r,0)}, v{SP+6*r}
            v_sub_f32 v{raw(0,r,1)}, v{raw(0,r,1)}, v{SP+6*r+1}
            v_add_f32 v{raw(0,r,2)}, v{raw(0,r,2)}, v{SP+6*r+2}
            v_sub_f32 v{raw(0,r,3)}, v{raw(0,r,3)}, v{SP+6*r+3}''')
            for q in range(4): a(f'v_mul_f32 v{raw(0,r,q)}, 0.5, v{raw(0,r,q)}')
        a('s_mov_b64 exec, -1')
    co = lambda t, r, k: CO + 24*t + 6*r + k
    for t in range(2):
        for r in range(4):
            a0, b0, a1, b1 = [raw(t,r,q) for q in range(4)]
            a(f'''v_add_f32 v{T}, v{a0}, v{a1}
            v_sub_f32 v{T+1}, v{b0}, v{b1}
            v_sub_f32 v{T+2}, v{a0}, v{a1}
            v_add_f32 v{T+3}, v{b0}, v{b1}
            v_mul_f32 v{T}, {fh(SC)}, v{T}
            v_mul_f32 v{T+1}, {fh(SC)}, v{T+1}
            v_fma_f32 v{co(t,r,0)}, -v{T+2}, v{TH+2*t}, v{T}
            v_fma_f32 v{co(t,r,1)}, -v{T+3}, v{TH+2*t}, v{T+1}
            v_fma_f32 v{co(t,r,2)}, v{T+2}, v{TH+2*t}, v{T}
            v_fma_f32 v{co(t,r,3)}, v{T+3}, v{TH+2*t}, v{T+1}
            v_mul_f32 v{co(t,r,4)}, v{T+2}, v{TH+2*t+1}
            v_mul_f32 v{co(t,r,5)}, v{T+3}, v{TH+2*t+1}''')
    a(f'''s_or_b32 s{sT}, s{sW}, s{sB}
    s_cselect_b32 s{sSPEC}, 0, s{sSPEC}
    s_cmp_eq_u32 s{sSPEC}, 0''')
    aMir = C1+44
    with a.cond('s_cbranch_scc1'):
        a('s_mov_b32 exec_hi, 0')
        for r in range(4):
            a(f'v_mul_f32 v{co(0,r,2)}, {fh(2*SC)}, v{SP+6*r+4}\nv_mul_f32 v{co(0,r,3)}, {fh(2*SC)}, v{SP+6*r+5}')
        a('s_mov_b64 exec, -1')
        a(f'''v_and_b32 v{T}, 1, v{vG}
        v_lshl_add_u32 v{T}, v{T}, 6, v{vJ}
        v_lshlrev_b32 v{aMir}, 3, v{T}
        v_add_u32 v{aMir}, {MIR}, v{aMir}
        s_cmp_eq_u32 s{sA}, 0
        s_cselect_b32 s{sT}, 0, -1''')
        for r in range(4):
            a(f'''v_add_u32 v{T+1}, {16*r}, v{T}
            v_sub_u32 v{T+1}, s{sT}, v{T+1}
            v_and_b32 v{T+1}, 127, v{T+1}
            v_lshlrev_b32 v{T+1}, 3, v{T+1}
            v_add_u32 v{aMir+1+r}, {MIR}, v{T+1}''')
    stamp(a, 'coef', 2)
    a.wait_vm_tag('dma')
    stamp(a, 'dma', 2)
    a('s_barrier')
    stamp(a, 6)
    stamp(a, 'bar', 2)
    for t in range(2):
        for pq in range(2):
            for h in range(2):
                a(f'ds_read2st64_b32 {vr(X+4*(2*t+pq)+2*h,2)}, v{aI2+2*t+pq} offset0:{16*h} offset1:{16*h+8}')
    for tile in range(4):
        for part in range(2):
            a(f'{MF16} {vr(acc(tile,part),4)}, {vr(X+4*tile,4)}, {vr(M1+4*part,4)}, 0')
    stamp(a, 's1', 2)
    for tile in range(4):
        twiddle(a, X+4*tile, acc(tile,0), acc(tile,1), T1, T)
    for tile in range(4):
        for part in range(2):
            a(f'{MF16} {vr(acc(tile,part),4)}, {vr(M8+4*part,4)}, {vr(X+4*tile,4)}, 0')
    def mult(t, YP, YQ):
        Pr, Pi, Qr, Qi = acc(2*t,0), acc(2*t,1), acc(2*t+1,0), acc(2*t+1,1)
        for r0 in (0, 2):
            rs = (r0, r0+1); tm = lambda r, k: T + 4*(r-r0) + k
            for r in rs:
                a(f'''v_mul_f32 v{tm(r,0)}, v{co(t,r,0)}, v{Pr+r}
                v_mul_f32 v{tm(r,1)}, v{co(t,r,0)}, v{Pi+r}
                v_mul_f32 v{tm(r,2)}, v{co(t,r,2)}, v{Qr+r}
                v_mul_f32 v{tm(r,3)}, v{co(t,r,2)}, v{Qi+r}''')
            for r in rs:
                a(f'''v_fma_f32 v{tm(r,0)}, -v{co(t,r,1)}, v{Pi+r}, v{tm(r,0)}
                v_fmac_f32 v{tm(r,1)}, v{co(t,r,1)}, v{Pr+r}
                v_fma_f32 v{tm(r,2)}, -v{co(t,r,3)}, v{Qi+r}, v{tm(r,2)}
                v_fmac_f32 v{tm(r,3)}, v{co(t,r,3)}, v{Qr+r}''')
            for r in rs:
                a(f'''v_fma_f32 v{tm(r,0)}, -v{co(t,r,4)}, v{YP[1]+r}, v{tm(r,0)}
                v_fmac_f32 v{tm(r,1)}, v{co(t,r,4)}, v{YP[0]+r}
                v_fmac_f32 v{tm(r,2)}, v{co(t,r,4)}, v{YQ[1]+r}
                v_fma_f32 v{tm(r,3)}, -v{co(t,r,4)}, v{YQ[0]+r}, v{tm(r,3)}''')
            for r in rs:
                a(f'''v_fma_f32 v{tm(r,0)}, -v{co(t,r,5)}, v{YP[0]+r}, v{tm(r,0)}
                v_fma_f32 v{tm(r,1)}, -v{co(t,r,5)}, v{YP[1]+r}, v{tm(r,1)}
                v_fmac_f32 v{tm(r,2)}, v{co(t,r,5)}, v{YQ[0]+r}
                v_fmac_f32 v{tm(r,3)}, v{co(t,r,5)}, v{YQ[1]+r}''')
            for r in rs:
                pack(a, X+8*t+r, tm(r,1), tm(r,0))
                pack(a, X+8*t+4+r, tm(r,3), tm(r,2))
    def mult_norm(t): mult(t, (acc(2*t+1,0), acc(2*t+1,1)), (acc(2*t,0), acc(2*t,1)))
    def mult_spec():
        YP, YQ = L, L+8
        a('s_mov_b32 exec_hi, 0')
        for r in range(4):
            a(f'ds_write2_b32 v{aMir}, v{acc(0,0)+r}, v{acc(0,1)+r} offset0:{32*r} offset1:{32*r+1}')
        for r in range(4):
            a(f'ds_read_b64 {vr(T+2*r,2)}, v{aMir+1+r}')
        a('s_mov_b64 exec, -1')
        for k in range(8):
            a(f'v_mov_b32 v{YP+k}, v{acc(1,0)+k}\nv_mov_b32 v{YQ+k}, v{acc(0,0)+k}')
        a('s_mov_b32 exec_hi, 0')
        for r in range(4):
            a(f'v_mov_b32 v{YP+r}, v{T+2*r}\nv_xor_b32 v{YP+4+r}, 0x80000000, v{T+2*r+1}')
        for k in range(8): a(f'v_mov_b32 v{YQ+k}, 0')
        a('s_mov_b64 exec, -1')
        mult(0, (YP, YP+4), (YQ, YQ+4))
    def istage1(t):
        for tile in (2*t, 2*t+1):
            for part in range(2):
                a(f'{MF16} {vr(acc(tile,part),4)}, {vr(X+4*tile,4)}, {vr(M8+4*part,4)}, 0')
    stamp(a, 's2', 2)
    a(f's_cmp_lg_u32 s{sSPEC}, 0')
    a.ifelse('s_cbranch_scc1', lambda: mult_norm(0), mult_spec)
    stamp(a, 'm0', 2)
    mult_norm(1)
    istage1(0)
    istage1(1)
    stamp(a, 'm1', 2)
    for tile in range(4):
        twiddle(a, X+4*tile, acc(tile,0), acc(tile,1), T1i, T)
    for tile in (0, 2, 1, 3):
        for part in range(2):
            a(f'{MF16} {vr(acc(tile,part),4)}, {vr(M1i+4*part,4)}, {vr(X+4*tile,4)}, 0')
    stamp(a, 'i2', 2)
    for pq in range(2):
        for r in range(4):
            for t in range(2):
                pack(a, L+8*pq+2*r+t, acc(2*t+pq,0)+r, acc(2*t+pq,1)+r)
            a(f'ds_write_b64 v{aO2w}, {vr(L+8*pq+2*r,2)} offset:{8*272*r+128*pq}')
    a(f's_lshl_b32 s{sT}, s{sW}, 19\ns_add_u32 s{sT}, s{sT}, {Z2}')
    stamp(a, 'wr', 2)
    a('s_waitcnt lgkmcnt(0)\ns_barrier')
    stamp(a, 'bar', 2)
    for q in range(4):
        a(f'ds_read_b128 {vr(X+4*q,4)}, v{aO2r} offset:{4*272*q}')
    for q in range(4):
        a(f'buffer_store_dwordx4 {vr(X+4*q,4)}, v{aZ2}, {srd(sWS)}, s{sT} offen {STF}')
        if q < 3: a(f's_add_u32 s{sT}, s{sT}, {4*32768}')
    stamp(a, 7)
    stamp(a, 'st', 2)
    a(f's_mul_i32 s{sT}, s2, {FLS}\ns_add_u32 s{sT}, s{sT}, {FL2}')
    a('s_waitcnt vmcnt(0)\ns_barrier')
    stamp(a, 8)
    stamp(a, 'drain', 2)
    a(f's_cmp_lg_u32 s{sW}, 0')
    with a.cond('s_cbranch_scc1'):
        a(f'''s_mov_b64 exec, 1
        buffer_store_dword v{aNon}, off, {srd(sWS)}, s{sT} sc1
        s_mov_b64 exec, -1''')
    a(f'''v_add_f32 v{T}, v{fJ}, v{fJ}
    v_add_f32 v{T+1}, 1.0, v{T}
    v_mul_f32 v{T+2}, 0x3e000000, v{fG}
    v_mul_f32 v{AR}, v{T}, v{T+2}
    v_mul_f32 v{AR+4}, v{T+1}, v{T+2}''')
    args4(a, AR, T, AR, 1/32); args4(a, AR+4, T+1, AR+4, 1/32)
    matrix(a, MD2, MD2+4, [AR+m for m in range(4)], ACC)
    matrix(a, MD2+8, MD2+12, [AR+4+m for m in range(4)], ACC+8)
    for m in range(8): a(f'v_xor_b32 v{MD2+16+m}, 0x80008000, v{MD2+8+m}')
    a(f'''v_mul_f32 v{T+2}, {fh(1/128)}, v{fG}
    v_mul_f32 v{AR}, v{T}, v{T+2}
    v_mul_f32 v{AR+4}, v{T+1}, v{T+2}''')
    args4(a, AR, T, AR, 1/512); args4(a, AR+4, T+1, AR+4, 1/512)
    trig4(a, [AR+m for m in range(8)], TW)
    scale(a, TW, 16, DG*DG)
    a(f'''v_mul_f32 v{T+2}, 0x3e000000, v{fG}
    v_mul_f32 v{AR}, v{fJ}, v{T+2}
    v_fmamk_f32 v{AR+2}, v{fJ}, {fh(1/16)}, v{AR}
    v_mul_f32 v{T+3}, 0.5, v{fJ}
    v_cmp_eq_u32 vcc, 0, v{vG}
    v_cndmask_b32 v{AR+1}, v{AR}, v{T+3}, vcc
    v_mov_b32 v{T+4}, 0x80008000
    v_cndmask_b32 v{T+4}, v{T+4}, 0, vcc''')
    matrix(a, MR+4, MR, [AR, AR+1, AR+2], ACC)
    a(f'''v_mov_b32 v{MR+3}, v{MR+2}
    v_xor_b32 v{MR+7}, 0x80008000, v{MR+6}
    v_xor_b32 v{MR+5}, v{T+4}, v{MR+5}''')
    aZ3, aE3w, aE3r, aOut = aX, aE1w, aE1r, aZ
    a(f'''s_lshl_b32 s{sT}, s{sW}, 12
    s_lshl_b32 s{sT+1}, s2, 15
    s_add_u32 s{sT+1}, s{sT+1}, {Z2}
    s_add_u32 s{sT}, s{sT}, s{sT+1}
    v_lshl_add_u32 v{aZ3}, v{vL}, 4, s{sT}
    v_mul_u32_u24 v{T}, {4*2312}, v{vG}
    v_mul_u32_u24 v{T+1}, 72, v{vJ}
    s_lshl_b32 s{sT}, s{sW}, 3
    v_add3_u32 v{aE3w}, v{T}, v{T+1}, s{sT}
    v_lshrrev_b32 v{T}, 3, v{vJ}
    v_mul_u32_u24 v{T}, 2312, v{T}
    v_and_b32 v{T+1}, 7, v{vJ}
    v_mul_u32_u24 v{T+1}, 144, v{T+1}
    v_lshl_add_u32 v{T+1}, v{vG}, 4, v{T+1}
    s_mul_i32 s{sT}, s{sW}, {2*2312}
    v_add3_u32 v{aE3r}, v{T}, v{T+1}, s{sT}
    s_lshl_b32 s{sT}, s{sW}, 8
    v_lshlrev_b32 v{T}, 21, v{vG}
    v_lshl_add_u32 v{T}, v{vJ}, 4, v{T}
    v_add_u32 v{aOut}, s{sT}, v{T}
    s_lshl_b32 s{sM}, s2, 12
    s_add_u32 s{sM+1}, s{sM}, {128*4096}
    s_add_u32 s{sM+2}, s{sM}, {2*128*4096}
    s_add_u32 s{sM+3}, s{sM}, {3*128*4096}
    s_cmp_lg_u32 s{sW}, 0''')
    with a.cond('s_cbranch_scc1'):
        for m in range(4):
            a(f'''v_lshl_or_b32 v{T}, v{vG}, 2, {m}
            v_lshl_add_u32 v{T}, v{T}, 4, v{vJ}
            v_sub_u32 v{T}, 256, v{T}
            v_and_b32 v{T+1}, 0xc0, v{T}
            v_and_b32 v{T+2}, 15, v{T}
            v_lshl_or_b32 v{T+1}, v{T+2}, 2, v{T+1}
            v_bfe_u32 v{T+2}, v{T}, 4, 2
            v_or_b32 v{T+1}, v{T+1}, v{T+2}
            v_lshlrev_b32 v{T+1}, 2, v{T+1}
            v_add_u32 v{aSp+m}, s{sT+1}, v{T+1}''')
    a(f'''v_lshl_add_u32 v{T}, v{vL}, 3, s{sW}
    v_mul_u32_u24 v{aFl}, {FLS}, v{T}''')
    poll(a, FL2, aFl, T)
    stamp(a, 9)
    def ld3(wh, t):
        a(f'buffer_load_dwordx4 {vr(X+8*wh+4*t,4)}, v{aZ3}, {srd(sWS)}, 0 offen offset:{2048*wh+1024*t} sc1')
    def norm3():
        for wh in range(2):
            ld3(wh, 0); ld3(wh, 1)
    def spec3():
        for wh in range(2):
            ld3(wh, 0)
            for m in range(4):
                a(f'buffer_load_dword v{X+8*wh+4+m}, v{aSp+m}, {srd(sWS)}, 0 offen offset:{2048*wh+1024} sc1')
        for wh in range(2):
            for m in range(4): a(f'v_xor_b32 v{X+8*wh+4+m}, 0x8000, v{X+8*wh+4+m}')
    a(f's_cmp_eq_u32 s{sW}, 0')
    a.ifelse('s_cbranch_scc1', norm3, spec3)
    for wh in range(2):
        for N in range(2):
            for part in range(2):
                a(f'{MF16} {vr(acc(2*wh+N,part),4)}, {vr(X+8*wh,4)}, {vr(MD2+8*N+4*part,4)}, 0')
        if wh == 0: stamp(a, 10)
        for N in range(2):
            for part in range(2):
                a(f'{MF16} {vr(acc(2*wh+N,part),4)}, {vr(X+8*wh+4,4)}, {vr(MD2+16*N+4*part,4)}, {vr(acc(2*wh+N,part),4)}')
    for tile in range(4):
        twiddle(a, L+4*tile, acc(tile,0), acc(tile,1), TW+8*(tile&1), T)
    for tile in (0, 2, 1, 3):
        for part in range(2):
            a(f'{MF16} {vr(acc(tile,part),4)}, {vr(MD1+4*part,4)}, {vr(L+4*tile,4)}, 0')
    for N in range(2):
        for r in range(4):
            for wh in range(2):
                pack(a, X+8*N+2*r+wh, acc(2*wh+N,0)+r, acc(2*wh+N,1)+r)
            a(f'ds_write_b64 v{aE3w}, {vr(X+8*N+2*r,2)} offset:{E3+2312*r+1152*N}')
    a('s_waitcnt lgkmcnt(0)\ns_barrier')
    for t in range(4):
        for h in range(2):
            a(f'ds_read_b64 {vr(L+4*t+2*h,2)}, v{aE3r} offset:{E3+1152*(t&1)+72*(t>>1)+8*h}')
    for t in range(4):
        for part in range(2):
            a(f'{MF16} {vr(acc(t,part),4)}, {vr(MR+4*part,4)}, {vr(L+4*t,4)}, 0')
    for r in range(4):
        for t in range(4):
            a(f'v_cvt_pk_bf16_f32 v{X+4*r+t}, v{acc(t,0)+r}, v{acc(t,1)+r}')
        a(f'buffer_store_dwordx4 {vr(X+4*r,4)}, v{aOut}, {srd(sOUT)}, s{sM+r} offen' + {0: '', 1: ' sc1', 2: ' nt', 3: ' sc0 sc1'}[OPT.get('outf', 0)])
    stamp(a, 11)
    if OPT['stamps']:
        a('s_waitcnt vmcnt(0)')
        stamp(a, 'end')
        stamps_out(a, len(NAMES['A'])+1, T, {k: k for k in range(13)})
    calib(a)
    a('s_endpgm')
    a.label('L_A_end')
    a.reset_counters()

P_ROWS = list(range(8)) + [256,258,260,262] + [512,516,768,772] + [1024,1280,1536,1792,1800]
def d_rows():
    h0 = list(range(8)) + [512,516,516] + [1024,1024] + [1536,1536,1536]
    h1 = [256,256,258,260,260,260,262,262] + [768,772,772] + [1280,1280] + [1792,1800,1800]
    return h0, h1
def place_rows():
    h0, h1 = d_rows()
    row = lambda i: (h0, h1)[(i >> 2) & 1][4*(i >> 3) + (i & 3)]
    G1 = {row(i) for i in itertools.chain(range(0,4), range(12,16), range(20,28))}
    G2 = {row(i) for i in itertools.chain(range(4,12), range(16,20), range(28,32))}
    both = sorted(G1 & G2); o1 = sorted(G1 - G2); o2 = sorted(G2 - G1)
    phys = {}
    pair = list(range(5)); single = list(range(37, 48))
    while pair:
        r = pair.pop(0); phys[o1.pop(0)] = 32 + r; phys[o2.pop(0)] = 48 + r
    for l0 in both + o1 + o2: phys[l0] = single.pop(0)
    assert sorted(phys) == sorted(P_ROWS) and len(set(phys.values())) == len(phys) and max(phys.values()) < 53
    for G in (G1, G2): assert len({phys[x] % 16 for x in G}) == len(G)
    return phys, [phys[row(i)] for i in range(32)]

def gen_B(a):
    vL, vJ, vG, vJ32 = 1, 2, 3, 4
    T = 5
    UL = 16
    PR = 32
    D = 40
    FR = 56
    W_ = 120
    ACC = 160
    BAND = 192
    GA = 200
    AD = 232
    aTA, aTB, aKw, aKe, aK3z, aK3w, aUw, aUz, aKA, aUB, aK3r, aSw, aSr, aOut, mTop, mBot = range(AD, AD+16)
    vDT, vDS = 248, 249
    RP = 14656
    KC = 64; KP = 2240; K3 = KC + 4*KP; ST = K3 + 1536; SP_ = RP; STB = 2048; U = 8*RP; UP = 4608
    assert ST + 2*STB <= RP and U + 8*UP <= LDS_BYTES
    TP = 272
    sP = 28 + 12
    sD0 = 56; sSE, sSO = 57, 58; sH = 59; sH2 = 36
    phys, rowmap = place_rows()

    ROLE[0] = 'B'
    a.label('L_B')
    prefetch_code(a, 'L_B', 'L_B_end', 250)
    a(f'''s_load_dwordx4 s[{sP}:{sP+3}], s[0:1], 32
    s_load_dwordx4 s[{sP+4}:{sP+7}], s[0:1], 48
    s_load_dwordx4 s[{sP+8}:{sP+11}], s[0:1], 64
    s_load_dwordx4 s[{sP+12}:{sP+15}], s[0:1], 80
    s_load_dwordx2 s[{sX}:{sX+1}], s[0:1], 24
    s_load_dwordx2 s[{sOUT}:{sOUT+1}], s[0:1], 96
    s_load_dwordx2 s[{sWS}:{sWS+1}], s[0:1], 112
    s_mov_b32 s{sWS+2}, {WS_SIZE}
    s_mov_b32 s{sWS+3}, 0x20000
    s_mov_b32 s{sX+2}, 4194304
    s_mov_b32 s{sX+3}, 0x20000
    s_mov_b32 s{sOUT+2}, 8388608
    s_mov_b32 s{sOUT+3}, 0x20000
    v_lshrrev_b32 v{T+2}, 6, v0
    v_and_b32 v{vL}, 63, v0
    v_readfirstlane_b32 s{sW}, v{T+2}
    v_and_b32 v{vJ}, 15, v0
    v_bfe_u32 v{vG}, v0, 4, 2
    v_and_b32 v{vJ32}, 31, v0
    s_and_b32 s{sT}, s2, 7
    s_lshl_b32 s{sT}, s{sT}, 7
    s_bfe_u32 s{sT+1}, s2, 0x40003
    s_lshl_b32 s{sT+2}, s{sT+1}, 3
    s_add_u32 s{sD0}, s{sT}, s{sT+2}
    s_add_u32 s{sT}, s{sD0}, s{sW}
    s_lshl_b32 s{sT+2}, s{sT}, 8
    s_lshl_b32 s{sT}, s{sT}, 1
    v_lshl_add_u32 v{T+2}, v{vL}, 2, s{sT+2}
    v_mov_b32 v{T+3}, s{sT}
    s_and_b32 s{sT+1}, s{sT+1}, 7
    s_lshl_b32 s{sT+1}, s{sT+1}, 5
    v_add_u32 v{T+4}, s{sT+1}, v0
    v_and_b32 v{T+4}, 0xff, v{T+4}
    s_lshl_b32 s{sT}, s{sD0}, 1
    v_lshl_add_u32 v{T+5}, v{T+4}, 13, s{sT}
    s_mov_b32 s{sH}, 0x200000
    s_mov_b32 s{sH2}, 0x1000
    s_mov_b32 s{sH2+1}, 0x201000''')
    a(f'global_load_short_d16_hi v{PR+6}, v{T+3}, s[{sP+12}:{sP+13}]')
    for k in range(6):
        a(f'global_load_dword v{PR+k}, v{T+2}, s[{sP+2*k}:{sP+2*k+1}]')
    a(f'global_load_short_d16_hi v{vDS}, v{T+3}, s[{sP+14}:{sP+15}]')
    aU = 252
    a(f'v_mov_b32 v{aU}, v{T+5}')
    ULh = (ACC+16, UL)
    def uload(k):
        hf, row = k >> 2, k & 3
        so = (('0', f's{sH2}'), (f's{sH}', f's{sH2+1}'))[hf][row >> 1]
        return f'buffer_load_dwordx4 {vr(ULh[hf]+4*row,4)}, v{aU}, {srd(sX)}, {so} offen offset:{2048*(row&1)}'
    stamp(a, 1)
    a(f'''v_lshlrev_b32 v{aUw}, 3, v{T+4}
    v_add_u32 v{aUw}, {U+512}, v{aUw}
    s_mul_i32 s{sT}, s{sW}, {UP}
    s_add_u32 s{sT}, s{sT}, {U}
    v_lshl_add_u32 v{aUz}, v{vL}, 3, s{sT}
    v_lshlrev_b32 v{T}, 4, v{vG}
    v_lshl_add_u32 v{T}, v{vJ}, 5, v{T}
    v_add_u32 v{aUB}, s{sT}, v{T}
    v_mov_b32 v6, 0
    v_mov_b32 v7, 0
    ds_write_b64 v{aUz}, v[6:7]
    s_mul_i32 s{sT}, s{sW}, {RP}
    s_mov_b32 m0, s{sT}
    v_lshrrev_b32 v{T+1}, 5, v{vL}
    v_lshl_add_u32 v{T+2}, v{T+1}, 4, s{sT}
    v_mul_u32_u24 v{aTB}, {TP}, v{vJ32}
    v_add_u32 v{aTB}, v{aTB}, v{T+2}''')
    words = [sum((rowmap[4*k+b]) << (8*b) for b in range(4)) for k in range(8)]
    a(f'v_lshrrev_b32 v{T+3}, 2, v{vJ32}\nv_mov_b32 v{T+4}, {hex(words[0])}')
    for k in range(1, 8):
        a(f'v_cmp_eq_u32 vcc, {k}, v{T+3}\nv_mov_b32 v{T+5}, {hex(words[k])}\nv_cndmask_b32 v{T+4}, v{T+4}, v{T+5}, vcc')
    a(f'''v_and_b32 v{T+3}, 3, v{vL}
    v_lshlrev_b32 v{T+5}, 3, v{T+3}
    v_bfe_u32 v{T+4}, v{T+4}, v{T+5}, 8
    v_mul_u32_u24 v{aTA}, {TP}, v{T+4}
    v_add_u32 v{aTA}, v{aTA}, v{T+2}''')
    a(f'''s_add_u32 s{sT}, s{sT}, {KC}
    v_lshlrev_b32 v{T+4}, 9, v{T+1}
    v_lshl_add_u32 v{T+4}, v{vJ32}, 4, v{T+4}
    v_add_u32 v{aKw}, s{sT}, v{T+4}
    v_mul_u32_u24 v{T+4}, {KP}, v{vG}
    v_lshl_add_u32 v{T+4}, v{vJ}, 2, v{T+4}
    v_add_u32 v{aKe}, s{sT}, v{T+4}
    v_bfe_u32 v{T+5}, v{vL}, 2, 2
    v_mul_u32_u24 v{T+4}, {KP}, v{T+5}
    v_lshl_add_u32 v{T+4}, v{T+3}, 3, v{T+4}
    v_lshlrev_b32 v{T+6}, 4, v{vG}
    v_sub_u32 v{T+4}, v{T+4}, v{T+6}
    v_add_u32 v{aKA}, s{sT}, v{T+4}
    s_add_u32 s{sT}, s{sT}, {K3-KC}
    v_lshrrev_b32 v{T+4}, 3, v{vL}
    v_mul_u32_u24 v{T+4}, 192, v{T+4}
    v_and_b32 v{T+6}, 7, v{vL}
    v_lshl_add_u32 v{T+4}, v{T+6}, 3, v{T+4}
    v_add_u32 v{aK3z}, s{sT}, v{T+4}
    v_lshlrev_b32 v{T+4}, 5, v{T+1}
    v_and_b32 v{T+6}, 30, v{vL}
    v_add3_u32 v{aK3w}, v{T+4}, v{T+6}, s{sT}
    v_and_b32 v{T+6}, 1, v{vL}
    v_lshlrev_b32 v{T+6}, 6, v{T+6}
    v_sub_u32 v{aK3w}, v{aK3w}, v{T+6}
    v_mul_u32_u24 v{T+4}, 192, v{T+5}
    v_lshl_add_u32 v{T+4}, v{T+3}, 3, v{T+4}
    v_lshlrev_b32 v{T+6}, 3, v{vG}
    v_sub_u32 v{T+4}, v{T+4}, v{T+6}
    v_add_u32 v{aK3r}, s{sT}, v{T+4}
    s_add_u32 s{sT}, s{sT}, {ST-K3}
    v_lshlrev_b32 v{T+4}, 5, v{vJ}
    v_lshl_add_u32 v{T+4}, v{vG}, 3, v{T+4}
    v_add_u32 v{aSw}, s{sT}, v{T+4}
    s_lshl_b32 s{sT}, s{sW}, 8
    s_add_u32 s{sT}, s{sT}, {ST}
    v_mul_u32_u24 v{T+4}, {SP_}, v{T+5}
    v_lshl_add_u32 v{T+4}, v{T+3}, 3, v{T+4}
    v_lshl_add_u32 v{T+4}, v{vG}, 5, v{T+4}
    v_add_u32 v{aSr}, s{sT}, v{T+4}
    s_lshl_b32 s{sT}, s{sW}, 19
    s_lshl_b32 s{sT+1}, s{sD0}, 1
    s_add_u32 s{sT}, s{sT}, s{sT+1}
    s_add_u32 s{sT}, s{sT}, 2048
    v_lshl_add_u32 v{aOut}, v{vL}, 12, s{sT}
    s_mov_b32 s{sSE}, 0x05040100
    s_mov_b32 s{sSO}, 0x07060302''')
    a(f'''v_lshlrev_b32 v{T+4}, 1, v{vJ}
    v_sub_u32 v{T+4}, v{T+4}, v{vG}
    v_cmp_ge_i32 vcc, 4, v{T+4}
    v_mov_b32 v{T+6}, 0xffff
    v_cndmask_b32 v{mTop}, 0, v{T+6}, vcc
    v_cmp_ge_i32 vcc, 3, v{T+4}
    v_cndmask_b32 v{mTop}, v{mTop}, -1, vcc''')
    for p, (msk, sh) in enumerate(((0x1ff, 4), (0x7f, 5))):
        a(f'''v_add_u32 v{T+4}, {sh}, v{vJ}
        v_mov_b32 v{T+6}, {msk}
        v_lshlrev_b32 v{T+4}, v{T+4}, v{T+6}
        v_lshlrev_b32 v{T+6}, 3, v{vG}
        v_lshrrev_b32 v{T+4}, v{T+6}, v{T+4}''')
        for m in range(4):
            a(f'''v_bfe_i32 v{T+6}, v{T+4}, {2*m}, 1
            v_bfe_i32 v{T+7}, v{T+4}, {2*m+1}, 1
            v_and_b32 v{T+6}, 0x3f80, v{T+6}
            v_and_b32 v{T+7}, 0x3f800000, v{T+7}
            v_or_b32 v{BAND+4*p+m}, v{T+6}, v{T+7}''')
    L2E = math.log2(math.e)
    hi = struct.unpack('<f', struct.pack('<f', L2E))[0]; lo = L2E - hi
    a(f'''v_mul_f32 v{T}, {fh(hi)}, v{PR+6}
    v_mov_b32 v{T+2}, {fh(hi)}
    v_fma_f32 v{T+1}, v{PR+6}, v{T+2}, -v{T}
    v_fmamk_f32 v{T+1}, v{PR+6}, {fh(lo)}, v{T+1}
    v_exp_f32 v{T}, v{T}
    v_mul_f32 v{T+1}, {fh(math.log(2))}, v{T+1}
    v_fmac_f32 v{T}, v{T}, v{T+1}
    v_cvt_pk_bf16_f32 v{T}, v{T}, v{T}
    v_and_b32 v{vDT}, 0xffff0000, v{T}''')
    a(f'v_mov_b32 v{vDS}, v{vDS}')
    stamp(a, 2)
    stamp(a, 'dt', 3)

    ANC = (W_+6, ACC)
    def anchors(p):
        o = []
        e = o.append
        R = FR + 20*p
        Ar, Ai, Br, Bi, Cr, Ci = range(R, R+6)
        for k in range(6):
            if p == 0: e(f'v_lshlrev_b32 v{R+k}, 16, v{PR+k}')
            else: e(f'v_and_b32 v{R+k}, 0xffff0000, v{PR+k}')
        for k in range(4): e(f'v_mul_f32 v{R+k}, v{vDT}, v{R+k}')
        e(f'v_mul_f32 v{Ar}, {fh(L2E)}, v{Ar}')
        e(f'v_mul_f32 v{Ai}, {fh(1/(2*math.pi))}, v{Ai}')
        w1, w8, w128, w256, w2, w4, c = [ANC[p]+2*i for i in range(7)]
        tm = R+6
        ls = ((w8, 8), (w128, 128), (w1, 1), (w256, 256))
        for i, (w, l) in enumerate(ls):
            if l != 1:
                e(f'v_mul_f32 v{tm+3*i}, {fh(l)}, v{Ar}'); e(f'v_mul_f32 v{tm+3*i+1}, {fh(l)}, v{Ai}')
        for i, (w, l) in enumerate(ls): e(f'v_fract_f32 v{tm+3*i+1}, v{Ai if l == 1 else tm+3*i+1}')
        e(f'v_mul_f32 v{c}, v{Cr}, v{Br}'); e(f'v_mul_f32 v{c+1}, v{Cr}, v{Bi}')
        e(f'v_fma_f32 v{c}, -v{Ci}, v{Bi}, v{c}'); e(f'v_fmac_f32 v{c+1}, v{Ci}, v{Br}')
        e(f'v_mul_f32 v{c}, {fh(DG)}, v{c}'); e(f'v_mul_f32 v{c+1}, {fh(-DG)}, v{c+1}')
        for i, (w, l) in enumerate(ls): e(f'v_exp_f32 v{tm+3*i}, v{Ar if l == 1 else tm+3*i}')
        for i, (w, l) in enumerate(ls):
            e(f'v_cos_f32 v{w}, v{tm+3*i+1}'); e(f'v_sin_f32 v{w+1}, v{tm+3*i+1}')
        e(f'v_mul_f32 v{tm+3}, {fh(DG)}, v{tm+3}')
        for i, (w, l) in enumerate(ls):
            e(f'v_mul_f32 v{w}, v{w}, v{tm+3*i}'); e(f'v_mul_f32 v{w+1}, v{w+1}, v{tm+3*i}')
        return o
    def kpass(p):
        o = []
        R = W_
        w1, w8, w128, w256, w2, w4, c = [ANC[p]+2*i for i in range(7)]
        tm = R+20
        cv = [T+k for k in range(8)]; cvi = [0, 0]
        def put(row, re, im, neg):
            d = cv[2*cvi[0] + (cvi[1] & 1)]; cvi[1] += 1
            return [f'v_perm_b32 v{d}, v{im}, v{re}, s{sSO}', f'ds_write_addtid_b32 v{d} offset:{row*TP}']
        def cmul(d, x, y, cj=False):
            if cj: return [f'v_mul_f32 v{d}, v{x}, v{y}', f'v_mul_f32 v{d+1}, v{x+1}, v{y}',
                    f'v_fmac_f32 v{d}, v{x+1}, v{y+1}', f'v_fma_f32 v{d+1}, -v{x}, v{y+1}, v{d+1}']
            return [f'v_mul_f32 v{d}, v{x}, v{y}', f'v_mul_f32 v{d+1}, v{x}, v{y+1}',
                    f'v_fma_f32 v{d}, -v{x+1}, v{y+1}, v{d}', f'v_fmac_f32 v{d+1}, v{x+1}, v{y}']
        def sq(d, x):
            return [f'v_mul_f32 v{d}, v{x}, v{x}', f'v_add_f32 v{d+1}, v{x}, v{x}',
                    f'v_fma_f32 v{d}, -v{x+1}, v{x+1}, v{d}', f'v_mul_f32 v{d+1}, v{d+1}, v{x+1}']
        qa = [tm, tm+2]; qb = [tm+4, tm+6]; pa = [tm+8, tm+10]; pb = [R, R+2]; pc = [R+4, tm+12]
        chA = [[f'v_mov_b32 v{cv[1]}, 0x3f80', f'ds_write_addtid_b32 v{cv[1]} offset:0',
                f'v_mul_f32 v{qa[1]}, {fh(DG)}, v{w8}', f'v_mul_f32 v{qa[1]+1}, {fh(DG)}, v{w8+1}'] + put(1, qa[1], qa[1]+1, 0)]
        cur = qa[1]
        for j in range(2, 16):
            d = qa[j & 1]; chA.append(cmul(d, cur, w8) + put(j, d, d+1, 0)); cur = d
        cvi[0] = 1
        chB = [put(16, w128, w128+1, 0)]; cur = w128
        for j in range(17, 32):
            d = qb[j & 1]; chB.append(cmul(d, cur, w8) + put(j, d, d+1, 0)); cur = d
        cvi[0] = 2
        chC = [put(phys[0], c, c+1, 1), sq(w2, w1), sq(w4, w2)]; cur = c
        for l in range(1, 8):
            d = pa[l & 1]; chC.append(cmul(d, cur, w1, True) + put(phys[l], d, d+1, 1)); cur = d
        cvi[0] = 3
        chD = []; cur = c
        for k in range(1, 8):
            d = pb[k & 1]; chD.append(cmul(d, cur, w256, True) + put(phys[256*k], d, d+1, 1)); cur = d
            if k == 1: br = [(w2, 258), (w2, 260), (w2, 262)]
            elif k < 4: br = [(w4, 256*k+4)]
            elif k == 7: br = [(w8, 1800)]
            else: br = []
            c2 = d
            for n, (w, l) in enumerate(br):
                d2 = pc[n & 1]; chD.append(cmul(d2, c2, w, True) + put(phys[l], d2, d2+1, 1)); c2 = d2
        for st in chC[:3]: o += st
        chains = [chA, chB, chC[3:], chD]
        order = []
        idx = [0]*4; lens = [len(x) for x in chains]
        while any(idx[i] < lens[i] for i in range(4)):
            cand = sorted([i for i in range(4) if idx[i] < lens[i]], key=lambda i: -(lens[i]-idx[i]))[:2]
            steps = [chains[i][idx[i]] for i in cand]
            for i in cand: idx[i] += 1
            for tup in itertools.zip_longest(*steps):
                o += [x for x in tup if x]
        return o
    def treads():
        for s in range(8):
            a(f'ds_read_b128 {vr(FR+8*s,4)}, v{aTA} offset:{32*s}')
            a(f'ds_read_b128 {vr(FR+8*s+4,4)}, v{aTB} offset:{32*s}')
    def kmf(s, first):
        return f'{MF32} {vr(D,16)}, {vr(FR+8*s,4)}, {vr(FR+8*s+4,4)}, {"0" if first else vr(D,16)}'
    S = [x for pr in zip(anchors(0), anchors(1)) for x in pr]
    S.append(lambda: stamp(a, 'anc', 3))
    S += kpass(0)
    S.append(lambda: (stamp(a, 'p1', 3), treads()))
    p2 = kpass(1)
    pos = {OPT.get('mf0', 30) + OPT.get('mfs', 1)*s: s for s in range(8)}
    for k, x in enumerate(p2):
        if k in pos: S.append(kmf(pos[k], pos[k] == 0))
        S.append(x)
    u0, us = OPT.get('u0', 0), OPT.get('us', 90)
    upos = {u0 + us*k: k for k in range(8)}
    assert max(upos) < len(S)
    for k, x in enumerate(S):
        if k in upos:
            a(f's_cmp_gt_u32 s{sW}, 3')
            with a.cond('s_cbranch_scc1', 'old'): a(uload(upos[k]))
        if callable(x): x()
        else: a(x)
    treads()
    stamp(a, 3)
    stamp(a, 'p2', 3)
    for s in range(8): a(kmf(s, False))
    stamp(a, 'mf', 3)
    def uwrite(hf):
        a(f's_cmp_gt_u32 s{sW}, 3')
        with a.cond('s_cbranch_scc1', 'old'):
            for c in range(8):
                d = W_ + 2*c
                for h in range(2):
                    a(f'v_perm_b32 v{d+h}, v{ULh[hf]+8*h+4+(c>>1)}, v{ULh[hf]+8*h+(c>>1)}, s{sSO if c&1 else sSE}')
                a(f'ds_write_b64 v{aUw}, {vr(d,2)} offset:{UP*c+2048*hf}')
    a('v_mov_b32 v6, 0\nv_mov_b32 v7, 0')
    a(f'ds_write_b64 v{aK3z}, v[6:7]')
    a(f'ds_write_b32 v{aKe}, v6 offset:8')
    if OPT.get('uearly', 1): uwrite(0)
    stamp(a, 'uw', 3)
    G = lambda sl, r: FR + 16*sl + 4*r
    for k in (G(0,2), G(0,3), T+3): a(f'v_mov_b32 v{k}, 0')
    a('s_mov_b64 exec, 1')
    a(f'v_add_f32 v{D}, v{D}, v{vDS}')
    a('s_mov_b64 exec, -1')
    dpp = lambda d, x, ctl, rm=0xf: a(f'v_mov_b32_dpp v{d}, v{x} {ctl} row_mask:{hex(rm)} bank_mask:0xf')
    pk = lambda d, x, y: a(f'v_cvt_pk_bf16_f32 v{d}, v{x}, v{y}')
    dpp(D+7, D+8, 'wave_rol:1', 0x8); dpp(D+10, D+11, 'wave_rol:1', 0x8); dpp(D+12, D+13, 'wave_rol:1', 0x8)
    dpp(D+7, D, 'wave_shl:1', 0xc); dpp(D+10, D+8, 'wave_shl:1'); dpp(D+12, D+11, 'wave_shl:1'); dpp(D+14, D+13, 'wave_shl:1', 0x3)
    pk(T+4, D+11, D+11)
    k0 = [D+i for i in range(8)]; k1 = [D+8, D+8, D+8, D+9, D+9, D+9, D+10, D+10]
    for m in range(4): pk(G(0,0)+m, k0[2*m], k0[2*m+1])
    a(f'v_readlane_b32 s{sT+1}, v{T+4}, 0')
    a(f'ds_write_b128 v{aKw}, {vr(G(0,0),4)} offset:32')
    dpp(T+3, D+7, 'wave_shr:1')
    for m in range(1, 4): pk(G(0,1)+m, k0[2*m-1], k0[2*m])
    pk(G(0,1), T+3, D)
    for m in range(3): pk(G(0,2)+1+m, k0[2*m], k0[2*m+1])
    dpp(G(0,2), G(0,0)+3, 'wave_shr:1')
    a(f'ds_write_b128 v{aKw}, {vr(G(0,1),4)} offset:{KP+32}')
    for m in range(3): a(f'v_mov_b32 v{G(0,3)+1+m}, v{G(0,1)+m}')
    dpp(G(0,3), G(0,1)+3, 'wave_shr:1')
    a(f'ds_write_b128 v{aKw}, {vr(G(0,2),4)} offset:{2*KP+32}')
    for m in range(4): pk(G(1,0)+m, k1[2*m], k1[2*m+1])
    a(f'ds_write_b128 v{aKw}, {vr(G(0,3),4)} offset:{3*KP+32}')
    for m in range(1, 4): pk(G(1,1)+m, k1[2*m-1], k1[2*m])
    a(f'v_mov_b32 v{G(1,1)}, v{G(1,0)}')
    a(f'ds_write_b128 v{aKw}, {vr(G(1,0),4)} offset:{1024+32}')
    dpp(G(1,2), G(0,0)+3, 'wave_ror:1', 0x1); dpp(G(1,3), G(0,1)+3, 'wave_ror:1', 0x1)
    for m in range(3): a(f'v_mov_b32 v{G(1,2)+1+m}, v{G(1,0)+m}')
    a(f'ds_write_b128 v{aKw}, {vr(G(1,1),4)} offset:{KP+1024+32}')
    dpp(G(1,2), G(1,0)+3, 'wave_shr:1'); dpp(G(1,3), G(1,1)+3, 'wave_shr:1')
    for m in range(3): a(f'v_mov_b32 v{G(1,3)+1+m}, v{G(1,1)+m}')
    a(f'ds_write_b128 v{aKw}, {vr(G(1,2),4)} offset:{2*KP+1024+32}')
    a(f'v_readlane_b32 s{sT}, v{G(1,1)+3}, 63')
    a(f'v_and_b32 v{T+4}, s{sT+1}, v{mTop}')
    a(f'ds_write_b128 v{aKw}, {vr(G(1,3),4)} offset:{3*KP+1024+32}')
    pk(T+5, D+11, D+12); pk(T+6, D+13, D+14)
    a(f'v_writelane_b32 v{T+4}, s{sT}, 48')
    a('s_mov_b32 vcc_lo, 0xaaaaaaaa\ns_mov_b32 vcc_hi, 0xaaaaaaaa')
    dpp(T+7, T+6, 'quad_perm:[1,1,3,3]')
    a(f'ds_write_b32 v{aKe}, v{T+4} offset:{2*(1024+16)}')
    a(f'v_cndmask_b32 v{T+7}, v{T+7}, v{T+5}, vcc')
    for r in range(4):
        off = 32 + 64 + 194*r
        a(f'ds_write_b16_d16_hi v{aK3w}, v{T+7} offset:{off}')
        a(f'ds_write_b16 v{aK3w}, v{T+7} offset:{768+off}')
    stamp(a, 'kw', 3)
    if not OPT.get('uearly', 1): uwrite(0)
    a('s_waitcnt lgkmcnt(0)\ns_barrier')
    stamp(a, 4)
    stamp(a, 'bar2', 3)
    accv = lambda t: vr(ACC+4*t, 4)
    started = set()
    def mf(t, A, B):
        a(f'{MF16} {accv(t)}, {vr(A,4)}, {vr(B,4)}, {accv(t) if t in started else "0"}'); started.add(t)
    def ldA(dst, dl):
        for hf in range(2):
            a(f'ds_read_b64_tr_b16 {vr(dst+2*hf,2)}, v{aKA} offset:{32+32*dl-8*hf}')
    def ldB(dst, jb, r):
        a(f'ds_read_b128 {vr(dst,4)}, v{aUB} offset:{512+512*jb-32*r}')
    def conv_group(jbs, pairs, extra=None):
        nB = len(jbs)
        def regs(buf):
            base = FR + 48*buf
            return (lambda x: base + 4*x), (lambda jb: base + 16 + 4*jbs.index(jb))
        def loads(r, buf):
            fa, fb = regs(buf)
            seq = []
            for k in range(max(4, nB)):
                if k < nB: seq.append(('B', jbs[k]))
                if k < 4: seq.append(('A', k))
            return [(lambda kind=kind, v=v: ldB(fb(v), v, r) if kind == 'B' else ldA(fa(v), r+16*v)) for kind, v in seq]
        for f in loads(1, 0): f()
        for n, r in enumerate(range(1, 16, 2)):
            fa, fb = regs(n & 1)
            nxt = loads(r+2, (n+1) & 1) if r < 15 else []
            todo = list(pairs)
            k = 0
            for (x, t) in todo:
                mf(t, fa(x), fb(t-x))
                if k < len(nxt): nxt[k](); k += 1
            for f in nxt[k:]: f()
            if extra and r == 1: extra(fb)
    def extra65(fb):
        ldA(GA, 65)
        for t in range(4, 8): mf(t, GA, fb(t-4))
    pairs_a = sorted([(x, t) for t in range(4) for x in range(t+1)], key=lambda p: max(p[0], p[1]-p[0]))
    conv_group([0,1,2,3], pairs_a, extra65)
    stamp(a, 5)
    stamp(a, '1a', 3)
    for yb in range(4):
        for p in range(2):
            a(f'ds_read_b128 {vr(FR+8*yb+4*p,4)}, v{aUB} offset:{512+512*yb-48+16*p}')
    for dl in range(4):
        for s in range(2):
            a(f'ds_read_b64_tr_b16 {vr(FR+32+4*dl+2*s,2)}, v{aK3r} offset:{768*s+32*(dl+1)}')
    for yb in range(4):
        for p in range(2):
            a(f'{MF16} {vr(GA+8*yb+4*p,4)}, {vr(FR+8*yb+4*p,4)}, {vr(BAND+4*p,4)}, 0')
    def stage(h):
        for t in range(4):
            for k in range(2):
                a(f'v_cvt_pk_bf16_f32 v{W_+16+2*t+k}, v{ACC+16*h+4*t+2*k}, v{ACC+16*h+4*t+2*k+1}')
            a(f'ds_write_b64 v{aSw}, {vr(W_+16+2*t,2)} offset:{STB*h+512*t}')
    stage(0)
    for yb in range(4):
        for p in range(2):
            for k in range(2):
                a(f'v_cvt_pk_bf16_f32 v{FR+4*yb+2*p+k}, v{GA+8*yb+4*p+2*k}, v{GA+8*yb+4*p+2*k+1}')
    for yb in range(4):
        for t in range(4+yb, 8):
            mf(t, FR+4*yb, FR+32+4*(t-yb-4))
    stamp(a, 's3', 3)
    uwrite(1)
    stamp(a, 'uw', 3)
    a('s_waitcnt lgkmcnt(0)\ns_barrier')
    stamp(a, 6)
    stamp(a, 'bar3', 3)
    def flush(h):
        for q in range(2):
            for hc in range(2):
                a(f'ds_read_b64_tr_b16 {vr(GA+4*q+2*hc,2)}, v{aSr} offset:{STB*h+4*SP_*hc+128*q}')
        for q in range(2):
            a(f's_mov_b32 s{sT}, {(1024*h+64*q)*4096}')
            a(f'buffer_store_dwordx4 {vr(GA+4*q,4)}, v{aOut}, {srd(sOUT)}, s{sT} offen')
    flush(0)
    pairs_b = sorted([(x, t) for t in range(4, 8) for x in range(4)], key=lambda p: max(p[0], p[1]-p[0]-1))
    conv_group([1,2,3,4,5,6,7], pairs_b)
    stamp(a, 7)
    stamp(a, '1b', 3)
    stage(1)
    a('s_waitcnt lgkmcnt(0)\ns_barrier')
    flush(1)
    stamp(a, 8)
    if OPT.get('wbl2'):
        a('s_waitcnt vmcnt(0)\ns_barrier')
        a(f's_cmp_lg_u32 s{sW}, 0')
        with a.cond('s_cbranch_scc1'): a('buffer_wbl2 sc1')
    if OPT['stamps']:
        a('s_waitcnt vmcnt(0)')
        stamp(a, 'end')
        stamps_out(a, len(NAMES['B'])+1, T+1, {0: 0, 1: 13, 4: 14, 9: 15})
    calib(a)
    a('s_endpgm')
    a.label('L_B_end')
    a.reset_counters()

HEADER = open('concat_heads__spectral_gfnet__ssm_conv_s4__prompt.s.ref').read().split('; Override launch')[0]

def build(**opt):
    OPT.update(opt)
    a = Asm()
    stamp(a, 0)
    if OPT.get('calib'): a('s_memrealtime s[96:97]')
    a(f's_cmp_ge_u32 s2, {128 if OPT.get("noB") else 256}\ns_cbranch_scc1 L_exit')
    if OPT.get('noA'): a('s_cmp_lt_u32 s2, 128\ns_cbranch_scc1 L_exit')
    a('s_cmp_ge_u32 s2, 128\ns_cbranch_scc1 L_B')
    gen_A(a)
    gen_B(a)
    a.label('L_exit')
    a('s_endpgm')
    a.pad()
    s = HEADER + f'; stamps A={",".join(NAMES["A"])} B={",".join(NAMES["B"])}\n' * bool(OPT['stamps']) + f'; @launch grid=(256,1,1) block=(512,1,1) lds={LDS_BYTES}\n'
    s += f'''.amdgcn_target "amdgcn-amd-amdhsa--gfx950"
.text
.globl {KN}
.p2align 8
.type {KN},@function
{KN}:
''' + a.text() + f'''.section .rodata,"a"
.p2align 6
.amdhsa_kernel {KN}
  .amdhsa_next_free_vgpr 256
  .amdhsa_next_free_sgpr 102
  .amdhsa_accum_offset 256
  .amdhsa_group_segment_fixed_size 0
  .amdhsa_kernarg_size 120
  .amdhsa_user_sgpr_count 2
  .amdhsa_user_sgpr_kernarg_segment_ptr 1
  .amdhsa_system_sgpr_workgroup_id_x 1
.end_amdhsa_kernel
'''
    return s, a

if __name__ == '__main__':
    out = sys.argv[1] if len(sys.argv) > 1 else 'k.s'
    opt = {}
    for x in sys.argv[2:]:
        k, _, v = x.partition('=')
        opt[k] = int(v) if v else True
    s, a = build(**opt)
    open(out, 'w').write(s)
    import subprocess
    sys.path.insert(0, 'cdna_kernels')
    import cdna_launch as cl
    open('_h.s', 'w').write(cl.with_harness_metadata(s, KN, 15, launch_lists=True))
    r = subprocess.run(['clang', '-x', 'assembler', '-target', 'amdgcn-amd-amdhsa', '-mcpu=gfx950', '_h.s', '-o', '_h.co'], capture_output=True, text=True)
    if r.returncode: print(r.stderr[:1500]); sys.exit(1)
    p = cl.address_register_problem('_h.co', KN)
    if p: print(p); sys.exit(1)
    print('instructions', sum(1 for x in a.ins if x.kind not in ('label','dir')), 'nops', a.nops)
```

```python
import sys, struct, math, itertools
from asmlib import Asm

KN = 'concat_heads__spectral_gfnet__ssm_conv_s4__prompt_kernel'
def fh(x): return '0x%08x' % struct.unpack('<I', struct.pack('<f', x))[0]
def vr(b, n): return f'v[{b}:{b+n-1}]'

OPT = dict(stamps=False)

Z1 = 0; Z2 = 4 << 20; FL1 = 8 << 20; FL2 = FL1 + 65536; GEN = FL1 + 131072; STAMP = 16 << 20
FLS = 256
WS_SIZE = 268435456
LDS_BYTES = 154688

MF16 = 'v_mfma_f32_16x16x32_bf16'
MF32 = 'v_mfma_f32_32x32x16_bf16'

sW = 3
sX, sWR, sWI, sOUT, sWS = 8, 12, 16, 20, 24
def srd(b): return f's[{b}:{b+3}]'
sT = 28
sNONCE = 40; sA = 41; sB = 42; sBP = 43; sDQ = 44; sSWZ = 45; sSPEC = 46; sM = 48
sCNT = 52; sMSK = 54
sWO = 56; sKB = 58; s2M = 59
sST = 60

NAMES = {'A': [], 'B': []}
ROLE = ['A']
def stamp(a, k, lvl=0):
    if not OPT['stamps']: return
    if lvl and OPT.get('detail') != lvl: return
    if not lvl and OPT.get('detail') and k not in (0, 'end'): return
    if k == 0: i = 0
    else:
        NAMES[ROLE[0]].append(str(k)); i = len(NAMES[ROLE[0]])
    assert i < 16
    a(f'{"s_memtime" if OPT.get("cyc") else "s_memrealtime"} s[{sST+2*i}:{sST+2*i+1}]')

def stamps_out(a, n, vt, dbgmap=None):
    if not OPT['stamps']: return
    if OPT.get('dbg'):
        a('s_load_dwordx2 s[28:29], s[0:1], 104\ns_mov_b32 s30, 256\ns_mov_b32 s31, 0x20000\ns_waitcnt lgkmcnt(0)')
        a(f's_not_b32 s{sST}, s{sST}')
        a('s_mov_b64 exec, 1')
        a(f's_cmp_lg_u32 s{sW}, 0')
        with a.cond('s_cbranch_scc1'):
            for k, slot in dbgmap.items():
                a(f'v_mov_b32 v{vt+1}, s{sST+2*k}')
                a(f'buffer_atomic_umax v{vt+1}, off, s[28:31], 0 offset:{4*slot}')
        a('s_mov_b64 exec, -1')
        return
    a('s_waitcnt lgkmcnt(0)')
    a(f's_lshl_b32 s{sT}, s2, 3\ns_add_u32 s{sT}, s{sT}, s{sW}\ns_lshl_b32 s{sT}, s{sT}, 6\ns_add_u32 s{sT}, s{sT}, {STAMP}')
    a(f'v_mov_b32 v{vt}, s{sT}')
    a('s_mov_b64 exec, 1')
    for k in range(n):
        a(f'v_mov_b32 v{vt+1}, s{sST+2*k}')
        a(f'buffer_store_dword v{vt+1}, v{vt}, {srd(sWS)}, 0 offen offset:{4*k}')
    a('s_mov_b64 exec, -1')

def calib(a):
    n = OPT.get('calib')
    if not n: return
    lab = a.newlab('Lcal')
    a('s_waitcnt vmcnt(0) lgkmcnt(0)')
    a.label(lab)
    a(f'''s_memrealtime s[30:31]
    s_waitcnt lgkmcnt(0)
    s_sub_u32 s30, s30, s96
    s_cmp_lt_u32 s30, {n}
    s_cbranch_scc1 {lab}''')

def trig4(a, args, tmp):
    for i, r in enumerate(args):
        a(f'v_cos_f32 v{tmp+2*i}, v{r}')
        a(f'v_sin_f32 v{tmp+2*i+1}, v{r}')

def args4(a, dst, vx, vbase, step):
    for m in (3, 2, 1):
        a(f'v_fmamk_f32 v{dst+m}, v{vx}, {fh(step*m)}, v{vbase}')
    if vbase != dst: a(f'v_mov_b32 v{dst}, v{vbase}')

def matrix(a, re, im, args, tmp):
    trig4(a, args, tmp)
    for m in range(len(args)):
        a(f'v_cvt_pk_bf16_f32 v{re+m}, v{tmp+2*m}, v{tmp+2*m+1}')
        a(f'v_cvt_pk_bf16_f32 v{im+m}, -v{tmp+2*m+1}, v{tmp+2*m}')

DG = 1.00282
sSEL = 47
def pack(a, d, lo, hi):
    a(f'v_perm_b32 v{d}, v{hi}, v{lo}, s{sSEL}')

def scale(a, base, n, g):
    for k in range(n): a(f'v_mul_f32 v{base+k}, {fh(g)}, v{base+k}')

def twiddle(a, dst, re, im, tw, tmp):
    for r in range(4):
        a(f'v_mul_f32 v{tmp+2*r}, v{re+r}, v{tw+2*r}')
        a(f'v_mul_f32 v{tmp+2*r+1}, v{im+r}, v{tw+2*r}')
    for r in range(4):
        a(f'v_fmac_f32 v{tmp+2*r}, v{im+r}, v{tw+2*r+1}')
        a(f'v_fma_f32 v{tmp+2*r+1}, -v{re+r}, v{tw+2*r+1}, v{tmp+2*r+1}')
    for r in range(4):
        pack(a, dst+r, tmp+2*r, tmp+2*r+1)

def poll(a, base, va, vf):
    lab = a.newlab('Lpoll'); done = a.newlab('Lpolldone')
    a(f's_mov_b32 s{sCNT}, 100000')
    a(f's_mov_b32 s{sT}, {base}')
    a('s_mov_b64 exec, 0xffff')
    a.label(lab)
    a(f'buffer_load_dword v{vf}, v{va}, {srd(sWS)}, s{sT} offen sc1')
    a('s_waitcnt vmcnt(0)')
    a(f'v_cmp_ne_u32 vcc, s{sNONCE}, v{vf}')
    a('s_and_b64 exec, exec, vcc')
    a(f's_cbranch_scc0 {done}')
    a(f's_sub_u32 s{sCNT}, s{sCNT}, 1')
    a(f's_cmp_lg_u32 s{sCNT}, 0')
    a(f's_cbranch_scc1 {lab}')
    a.label(done)
    a('s_mov_b64 exec, -1')

def prefetch_code(a, start, end, vt):
    a(f's_getpc_b64 s[{sT}:{sT+1}]')
    lab = a.newlab('Lpc'); a.label(lab)
    a(f'v_lshlrev_b32 v{vt}, 6, v0')
    a(f'v_min_u32 v{vt}, ({end}-{lab}-4), v{vt}')
    a(f'global_load_dword v{vt+1}, v{vt}, s[{sT}:{sT+1}]')

def gen_A(a):
    vJ, vG, vL = 1, 2, 3
    T = 4
    L, X, ACC = 16, 32, 48
    C1 = 80; MR = C1; MD1 = C1+8; TW = C1+16; MD2 = C1+32
    C2 = 136; M1 = C2; T1 = C2+8; M8 = C2+16; T1i = C2+24; M1i = C2+32
    CO = 176
    AD = 224
    aX, aE1w, aE1r, aZ, aFl, aNon, aDma, aI2, aWw, aWr, aO2w, aO2r, aZ2, aW0, aW1 = \
        AD, AD+1, AD+2, AD+3, AD+4, AD+5, AD+6, AD+8, AD+12, AD+13, AD+15, AD+16, AD+17, AD+18, AD+19
    aSp = AD+20
    fJ, fG = AD+24, AD+25
    TT = AD+26
    E1 = 0; I2 = 36864; O2 = I2 + 32768 + 64; WSL = O2 + 34816; MIR = WSL + 33280; SPL = MIR + 1024; NON = SPL + 2048; E3 = 0
    assert NON + 16 <= LDS_BYTES
    acc = lambda tile, part: ACC + 8*tile + 4*part

    a.label('L_A')
    prefetch_code(a, 'L_A', 'L_A_end', TT)
    a(f'''s_load_dwordx2 s[{sX}:{sX+1}], s[0:1], 0
    s_load_dwordx2 s[{sWS}:{sWS+1}], s[0:1], 112
    s_load_dwordx2 s[{sWR}:{sWR+1}], s[0:1], 8
    s_load_dwordx2 s[{sWI}:{sWI+1}], s[0:1], 16
    s_load_dwordx2 s[{sOUT}:{sOUT+1}], s[0:1], 96
    s_mov_b32 s{sSEL}, 0x07060302
    s_mov_b32 s{sX+2}, 4194304
    s_mov_b32 s{sX+3}, 0x20000
    s_mov_b32 s{sWS+2}, {WS_SIZE}
    s_mov_b32 s{sWS+3}, 0x20000
    s_mov_b32 s{sWR+2}, 2101248
    s_mov_b32 s{sWR+3}, 0x20000
    s_mov_b32 s{sWI+2}, 2101248
    s_mov_b32 s{sWI+3}, 0x20000
    s_mov_b32 s{sOUT+2}, 8388608
    s_mov_b32 s{sOUT+3}, 0x20000
    v_lshrrev_b32 v{T}, 6, v0
    v_and_b32 v{vL}, 63, v0
    v_readfirstlane_b32 s{sW}, v{T}
    v_and_b32 v{vJ}, 15, v0
    v_bfe_u32 v{vG}, v0, 4, 2
    s_lshl_b32 s{sM}, s2, 11
    s_add_u32 s{sM+1}, s{sM}, 262144
    s_add_u32 s{sM+2}, s{sM}, 524288
    s_add_u32 s{sM+3}, s{sM}, 786432
    v_lshlrev_b32 v{aX}, 20, v{vG}
    v_lshl_or_b32 v{aX}, v{vJ}, 3, v{aX}
    v_lshl_or_b32 v{aX}, v{T}, 8, v{aX}''')
    if OPT.get('wb'):
        a(f's_add_u32 s{sWS}, s{sWS}, {OPT["wb"] << 20}\ns_addc_u32 s{sWS+1}, s{sWS+1}, 0\ns_mov_b32 s{sWS+2}, {WS_SIZE - (OPT["wb"] << 20)}')
    xsrc = {}
    for m in range(4):
        for nb in range(2):
            r = L + 4*m + 2*nb
            xsrc[m, nb] = r
            a(f'buffer_load_dwordx2 {vr(r,2)}, v{aX}, {srd(sX)}, s{sM+m} offen offset:{128*nb}')
    stamp(a, 1)
    stamp(a, 'xiss', 1)
    if OPT.get('touch'):
        a(f's_cmp_lg_u32 s{sW}, 7')
        with a.cond('s_cbranch_scc1'):
            a(f'''v_lshlrev_b32 v{TT}, 17, v{vL}
            buffer_load_dword v{TT+5}, v{TT}, {srd(sWS)}, 0 offen sc1
            buffer_load_dword v{TT+5}, v{TT}, {srd(sOUT)}, 0 offen sc1''')
    a(f'''s_and_b32 s{sA}, s2, 7
    s_lshr_b32 s{sB}, s2, 3
    s_lshl_b32 s{sBP}, s{sA}, 12
    s_mov_b32 s{sDQ}, 2048
    s_mov_b32 s{sSPEC}, 0
    s_cmp_lg_u32 s{sA}, 0''')
    with a.cond('s_cbranch_scc1'):
        a(f'''s_and_b32 s{sA}, s{sB}, 8
        s_lshl_b32 s{sBP}, s{sA}, 8
        s_and_b32 s{sB}, s{sB}, 7
        s_mov_b32 s{sDQ}, 1024
        s_mov_b32 s{sSPEC}, 1''')
    a(f'''s_lshl_b32 s{sT}, s{sB}, 7
    s_add_u32 s{sBP}, s{sBP}, s{sT}''')
    a(f'v_cvt_f32_u32 v{fJ}, v{vJ}\nv_cvt_f32_u32 v{fG}, v{vG}')
    a(f'''v_lshrrev_b32 v{T}, 1, v{vJ}
    v_cmp_eq_u32 vcc, 1, v{vJ}
    v_cndmask_b32 v{T}, v{T}, 8, vcc
    v_cvt_f32_u32 v{T}, v{T}
    v_and_b32 v{T+1}, 1, v{vJ}
    v_lshlrev_b32 v{T+1}, 31, v{T+1}
    v_cndmask_b32 v{TT+2}, v{T+1}, 0, vcc
    v_mul_f32 v{T+1}, 0x3e800000, v{fG}
    v_mul_f32 v{X}, v{T}, v{T+1}''')
    args4(a, X, T, X, 1/16)
    matrix(a, MR, MR+4, [X+m for m in range(4)], ACC)
    for m in range(8): a(f'v_xor_b32 v{MR+m}, v{TT+2}, v{MR+m}')
    a(f'v_mul_f32 v{X}, v{fJ}, v{T+1}')
    args4(a, X, fJ, X, 1/16)
    matrix(a, MD1, MD1+4, [X+m for m in range(4)], ACC)
    a(f'v_mul_f32 v{T+2}, {fh(1/64)}, v{fG}\nv_mul_f32 v{X}, v{fJ}, v{T+2}')
    a(f'v_fmamk_f32 v{X+4}, v{fJ}, {fh(1/512)}, v{X}')
    args4(a, X, fJ, X, 2/512); args4(a, X+4, fJ, X+4, 2/512)
    trig4(a, [X+m for m in range(8)], TW)
    scale(a, TW, 16, DG*DG)
    a(f'v_mul_f32 v{X}, v{fJ}, v{T+1}')
    a(f'v_fmamk_f32 v{X+4}, v{fJ}, {fh(1/32)}, v{X}')
    args4(a, X, fJ, X, 2/32); args4(a, X+4, fJ, X+4, 2/32)
    matrix(a, MD2, MD2+4, [X+m for m in range(4)], ACC)
    matrix(a, MD2+8, MD2+12, [X+4+m for m in range(4)], ACC+8)
    for m in range(8): a(f'v_xor_b32 v{MD2+16+m}, 0x80008000, v{MD2+8+m}')
    a(f'''v_mul_u32_u24 v{T}, 72, v{vJ}
    s_lshl_b32 s{sT}, s{sW}, 3
    v_mul_u32_u24 v{aE1w}, 9216, v{vG}
    v_add3_u32 v{aE1w}, v{aE1w}, v{T}, s{sT}
    s_mul_i32 s{sT}, s{sW}, 4608
    v_lshl_add_u32 v{aE1r}, v{vG}, 4, v{T}
    v_add_u32 v{aE1r}, s{sT}, v{aE1r}
    s_lshl_b32 s{sT}, s{sW}, 12
    s_lshl_b32 s{sT+1}, s2, 15
    s_add_u32 s{sT}, s{sT}, s{sT+1}
    v_lshl_add_u32 v{aZ}, v{vL}, 4, s{sT}''')
    aS1, aBp, aSx = TT+3, TT+4, TT+5
    a(f'''v_sub_u32 v{T}, 16, v{vJ}
    v_and_b32 v{T}, 15, v{T}
    v_lshlrev_b32 v{T}, 4, v{T}
    v_sub_u32 v{T+1}, 3, v{vG}
    v_lshl_add_u32 v{T}, v{T+1}, 8, v{T}
    v_add_u32 v{aS1}, s{sT+1}, v{T}
    v_add_u32 v{T}, 16, v{vL}
    v_and_b32 v{T}, 63, v{T}
    v_lshlrev_b32 v{aBp}, 2, v{T}''')
    for r in range(4): a(f'v_mov_b32 v{aSp+r}, 0')
    SC1 = OPT.get('z1scat', 1)
    if SC1:
        a(f'''s_lshl_b32 s{sT}, s2, 8
        s_lshl_b32 s{sT+1}, s{sW}, 15
        s_add_u32 s{sT+1}, s{sT+1}, s{sT}
        v_lshrrev_b32 v{T}, 3, v{vL}
        v_and_b32 v{T+1}, 7, v{vL}
        v_lshlrev_b32 v{T+1}, 4, v{T+1}
        v_lshl_add_u32 v{T}, v{T}, 18, v{T+1}
        v_add_u32 v{aZ}, s{sT+1}, v{T}
        v_sub_u32 v{T}, 16, v{vJ}
        v_and_b32 v{T+1}, 7, v{T}
        v_bfe_u32 v{T}, v{T}, 3, 1
        v_sub_u32 v{T+2}, 3, v{vG}
        v_lshl_add_u32 v{T}, v{T+2}, 1, v{T}
        v_lshlrev_b32 v{T+1}, 4, v{T+1}
        v_lshl_add_u32 v{T}, v{T}, 18, v{T+1}
        v_add_u32 v{aS1}, s{sT}, v{T}
        s_mov_b32 s{s2M}, 0x200000''')
    WL = CO+32
    a(f'''v_lshrrev_b32 v{T}, 2, v0
    v_lshl_add_u32 v{T}, v{T}, 4, s{sA}
    v_sub_u32 v{T+1}, 0, v{T}
    v_and_b32 v{T+1}, 0x7ff, v{T+1}
    v_and_b32 v{T+2}, 3, v0
    v_lshlrev_b32 v{T+2}, 5, v{T+2}
    v_sub_u32 v{T+3}, 96, v{T+2}
    s_movk_i32 s{sT}, 1026
    v_mad_u32_u24 v{aW0}, v{T}, s{sT}, v{T+2}
    v_mad_u32_u24 v{aW1}, v{T+1}, s{sT}, v{T+3}
    s_lshr_b32 s{sKB}, s{sB}, 1
    s_lshl_b32 s{sKB}, s{sKB}, 3
    s_and_b32 s{sT}, s{sB}, 1
    s_add_u32 s{sKB}, s{sKB}, s{sT}
    s_lshl_b32 s{sKB}, s{sKB}, 3
    s_lshl_b32 s{sWO}, s{sKB}, 1
    s_sub_u32 s{sWO+1}, {1010-96}, s{sWO}''')
    SX = CO+30
    a(f'''v_and_b32 v{T+2}, 3, v0
    v_mul_u32_u24 v{T}, 1026, v{T}
    v_mul_u32_u24 v{T+1}, 1026, v{T+1}
    v_lshlrev_b32 v{T+3}, 9, v{T+2}
    v_sub_u32 v{T+3}, 1536, v{T+3}
    v_add_u32 v{T}, v{T}, v{T+3}
    v_cmp_eq_u32 vcc, 0, v{T+2}
    s_add_u32 s{sT}, s{sSPEC}, 2
    s_cmp_eq_u32 s{sB}, 0
    s_cselect_b32 s{sT}, s{sT}, 0
    v_cndmask_b32 v{T}, v{T}, v{T+1}, vcc
    v_cmp_gt_u32 vcc, s{sT}, v{T+2}
    v_mov_b32 v{T+1}, 0x7ffffff0
    v_cndmask_b32 v{aSx}, v{T+1}, v{T}, vcc''')
    WPOS = [int(c) for c in str(OPT.get("wpos", 1266)).zfill(5)]
    def wat(p):
        for q in range(4):
            if WPOS[q] == p:
                a(f'buffer_load_dwordx4 {vr(WL+4*q,4)}, v{(aW0,aW1)[q>>1]}, {srd((sWR,sWI)[q&1])}, s{sWO+(q>>1)} offen')
        if WPOS[4] == p:
            a(f'buffer_load_ushort v{SX}, v{aSx}, {srd(sWR)}, 0 offen')
            a(f'buffer_load_ushort v{SX+1}, v{aSx}, {srd(sWI)}, 0 offen')
    wat(0)
    stamp(a, 'const', 1)
    xt = lambda nb, tp: X + 4*(2*tp + nb)
    for tp in range(2):
        for nb in range(2):
            for h in range(2):
                a(f'v_pk_mov_b32 {vr(xt(nb,tp)+2*h,2)}, {vr(xsrc[2*h,nb],2)}, {vr(xsrc[2*h+1,nb],2)} op_sel:[{tp},{tp}]')
    stamp(a, 2)
    stamp(a, 'xland', 1)
    a(f's_cmp_lg_u32 s{sW}, 0')
    with a.cond('s_cbranch_scc1'):
        a(f'''s_mov_b32 s{sT}, {GEN}
        s_mov_b64 exec, 1
        buffer_load_dword v{aNon}, off, {srd(sWS)}, s{sT} sc1
        s_mov_b64 exec, -1''')
    wat(1)
    for tp in range(2):
        for nb in range(2):
            for part in range(2):
                a(f'{MF16} {vr(acc(2*tp+nb,part),4)}, {vr(MR+4*part,4)}, {vr(xt(nb,tp),4)}, 0')
    for tp in range(2):
        for r in range(4):
            for nb in range(2):
                a(f'v_cvt_pk_bf16_f32 v{L+8*tp+2*r+nb}, v{acc(2*tp+nb,0)+r}, v{acc(2*tp+nb,1)+r}')
            a(f'ds_write_b64 v{aE1w}, {vr(L+8*tp+2*r,2)} offset:{E1+2304*r+1152*tp}')
    wat(2)
    stamp(a, 'wr', 1)
    a('s_waitcnt lgkmcnt(0)')
    stamp(a, 'wrdone', 1)
    a('s_barrier')
    stamp(a, 'bar', 1)
    for wh in range(2):
        for t in range(2):
            for h in range(2):
                a(f'ds_read_b64 {vr(X+8*wh+4*t+2*h,2)}, v{aE1r} offset:{E1+2304*wh+1152*t+8*h}')
    for tile in range(4):
        for part in range(2):
            a(f'{MF16} {vr(acc(tile,part),4)}, {vr(X+4*tile,4)}, {vr(MD1+4*part,4)}, 0')
    wat(3)
    stamp(a, 'd1iss', 1)
    for tile in range(4):
        twiddle(a, X+4*tile, acc(tile,0), acc(tile,1), TW+8*(tile&1), T)
    stamp(a, 'tw', 1)
    wat(4)
    for wh in range(2):
        for N in range(2):
            for part in range(2):
                a(f'{MF16} {vr(acc(2*wh+N,part),4)}, {vr(MD2+4*part,4)}, {vr(X+8*wh,4)}, 0')
        for N in range(2):
            for part in range(2):
                a(f'{MF16} {vr(acc(2*wh+N,part),4)}, {vr(MD2+8+8*N+4*part,4)}, {vr(X+8*wh+4,4)}, {vr(acc(2*wh+N,part),4)}')
    STF = {0: 'sc1', 1: 'sc0 sc1', 2: 'sc1 nt'}[OPT.get('stf', 0)]
    def z1_store(wh, N, w0=False):
        for r in range(4): pack(a, L+8*wh+4*N+r, acc(2*wh+N,0)+r, acc(2*wh+N,1)+r)
        so, off = '0', 2048*wh+1024*N
        if SC1:
            so, off = (f's{s2M}' if N else '0'), 128*wh
            if w0: so, off = f's{s2M}', 0
        a(f'buffer_store_dwordx4 {vr(L+8*wh+4*N,4)}, v{aZ}, {srd(sWS)}, {so} offen offset:{off} {STF}')
        a.tag_vm('z1')
    z1_store(0, 0)
    stamp(a, 'st0', 1)
    def norm1():
        z1_store(0, 1); z1_store(1, 0); z1_store(1, 1)
    def spec1():
        a(f'v_cmp_eq_u32 vcc, 0, v{vJ}')
        for wh in range(2):
            R = T + 5*wh
            for r in range(4):
                pack(a, R+r, acc(2*wh+1,0)+r, acc(2*wh+1,1)+r)
                a(f'v_xor_b32 v{R+r}, 0x80000000, v{R+r}')
                if r == 0: a(f'ds_bpermute_b32 v{R+4}, v{aBp}, v{R}')
            if wh == 0: z1_store(1, 0, True)
        for wh in range(2):
            R = T + 5*wh; O = L+8*wh+4
            for k in (3, 2, 1, 0):
                a(f'v_cndmask_b32 v{O+k}, v{R+3-k}, v{R+4-k}, vcc')
            so, off = '0', 2048*wh+1024
            if SC1: so, off = (f's{s2M}' if wh else '0'), 128
            a(f'buffer_store_dwordx4 {vr(O,4)}, v{aS1}, {srd(sWS)}, {so} offen offset:{off} {STF}')
            a.tag_vm('z1')
    a(f's_cmp_eq_u32 s{sW}, {99 if OPT.get("nospec") else 0}')
    a.ifelse('s_cbranch_scc1', norm1, spec1)
    stamp(a, 3)
    stamp(a, 'st3', 1)
    wat(5)
    if 6 in WPOS: a('s_barrier')
    wat(6)
    stamp(a, 'wiss', 1)
    a(f's_cmp_lg_u32 s{sW}, 0')
    with a.cond('s_cbranch_scc1'):
        a(f'''v_add_u32 v{aNon}, 0x9e3779b9, v{aNon}
        v_mov_b32 v{T}, {NON}
        s_mov_b64 exec, 1
        ds_write_b32 v{T}, v{aNon}
        s_mov_b64 exec, -1
        s_mul_i32 s{sT}, s2, {FLS}
        s_add_u32 s{sT}, s{sT}, {FL1}
        s_waitcnt lgkmcnt(0)''')
    a.wait_vm_tag('z1')
    stamp(a, 'drain', 1)
    a('s_barrier')
    a(f's_cmp_lg_u32 s{sW}, 0')
    with a.cond('s_cbranch_scc1'):
        a(f'''s_mov_b64 exec, 1
        buffer_store_dword v{aNon}, off, {srd(sWS)}, s{sT} sc1
        s_mov_b64 exec, -1''')
    stamp(a, 4)
    stamp(a, 'bar2', 1)
    wat(7)
    a(f'v_mov_b32 v{aNon}, {NON}\nds_read_b32 v{aNon}, v{aNon}')
    SP = C1+16
    fK, fS, fF = T, T+1, T+2
    AR = L
    a(f'''v_cvt_f32_u32 v{fF}, s{sA}
    v_mul_f32 v{fF}, {fh(1/16)}, v{fF}
    v_add_f32 v{fK}, v{fJ}, v{fF}
    v_and_b32 v{fS}, 1, v{vG}
    v_lshlrev_b32 v{fS}, 2, v{fS}
    v_cvt_f32_u32 v{fS}, v{fS}
    v_mul_f32 v{T+3}, 0x3e800000, v{fG}
    v_mul_f32 v{AR}, v{fK}, v{T+3}''')
    args4(a, AR, fK, AR, 1/16)
    matrix(a, M1, M1+4, [AR+m for m in range(4)], ACC)
    a(f'v_mul_f32 v{T+3}, {fh(1/128)}, v{fS}\nv_mul_f32 v{AR}, v{fK}, v{T+3}')
    args4(a, AR, fK, AR, 1/128)
    trig4(a, [AR+m for m in range(4)], T1)
    scale(a, T1, 8, DG)
    a(f'''v_and_b32 v{T+4}, 7, v{vJ}
    v_cvt_f32_u32 v{T+4}, v{T+4}
    v_mul_f32 v{T+3}, 0x3e000000, v{fS}
    v_mul_f32 v{AR}, v{T+4}, v{T+3}''')
    args4(a, AR, T+4, AR, 1/8)
    matrix(a, M8, M8+4, [AR+m for m in range(4)], ACC)
    a(f'''v_lshrrev_b32 v{T+5}, 3, v{vJ}
    v_lshrrev_b32 v{T+6}, 1, v{vG}
    v_cmp_eq_u32 vcc, v{T+5}, v{T+6}''')
    for m in range(8): a(f'v_cndmask_b32 v{M8+m}, 0, v{M8+m}, vcc')
    a(f'''v_fmamk_f32 v{T+3}, v{fG}, 4.0, v{fF}
    v_mul_f32 v{T+7}, {fh(1/128)}, v{T+3}
    v_mul_f32 v{AR}, v{T+4}, v{T+7}'''.replace('4.0', fh(4.0)))
    args4(a, AR, T+4, AR, 1/128)
    trig4(a, [AR+m for m in range(4)], T1i)
    scale(a, T1i, 8, DG*DG)
    a(f'v_mul_f32 v{T+7}, {fh(1/16)}, v{T+3}\nv_mul_f32 v{AR}, v{fJ}, v{T+7}')
    args4(a, AR, fJ, AR, 1/16)
    matrix(a, M1i, M1i+4, [AR+m for m in range(4)], ACC)
    a(f'''v_bfe_u32 v{T}, v{vL}, 3, 1
    v_mul_u32_u24 v{T}, s{sDQ}, v{T}
    v_lshl_add_u32 v{T}, v{vG}, 15, v{T}
    v_add_u32 v{T}, s{sBP}, v{T}
    v_and_b32 v{T+1}, 7, v{vL}
    v_lshl_add_u32 v{aZ2}, v{T+1}, 4, v{T}''')
    if SC1: a(f'v_and_b32 v{T}, 56, v{vL}\nv_lshlrev_b32 v{T}, 4, v{T}')
    a(f'''v_xor_b32 v{T+1}, v{T+1}, v{vG}
    v_lshl_add_u32 v{aDma}, v{T+1}, 4, v{T}
    v_xor_b32 v{T+1}, 4, v{T+1}
    v_lshl_add_u32 v{aDma+1}, v{T+1}, 4, v{T}''')
    a(f'''v_and_b32 v{T}, 7, v{vJ}
    v_xor_b32 v{T+1}, s{sW}, v{T}
    v_lshlrev_b32 v{T+1}, 4, v{T+1}
    v_lshl_or_b32 v{T+1}, v{T}, 8, v{T+1}
    v_lshl_or_b32 v{T+1}, v{T+5}, 3, v{T+1}
    v_mul_u32_u24 v{T+2}, 8196, v{vG}
    v_add_u32 v{T+1}, v{T+1}, v{T+2}
    v_add_u32 v{aI2}, {I2}, v{T+1}
    v_add_u32 v{aI2+1}, {I2+128}, v{T+1}
    v_add_u32 v{aI2+2}, {I2+4}, v{T+1}
    v_add_u32 v{aI2+3}, {I2+132}, v{T+1}''')
    a(f'''s_lshr_b32 s{sT}, s{sW}, 2
    s_lshl_b32 s{sT}, s{sT}, 4
    s_and_b32 s{sT+1}, s{sW}, 3
    s_lshl_b32 s{sT+1}, s{sT+1}, 5
    s_add_u32 s{sT}, s{sT}, s{sT+1}
    s_lshl_b32 s{sT}, s{sT}, 2
    s_add_u32 s{sT}, s{sT}, {WSL}
    v_and_b32 v{T}, 3, v{vL}
    v_mul_u32_u24 v{T}, 2080, v{T}
    v_and_b32 v{T+1}, 60, v{vL}
    v_add3_u32 v{aWw}, v{T}, v{T+1}, s{sT}
    v_and_b32 v{T}, 1, v{vG}
    v_lshl_add_u32 v{T}, v{T}, 4, v{vJ}
    v_lshlrev_b32 v{T}, 2, v{T}
    v_mul_u32_u24 v{T+1}, {8*520}, v{T+6}
    v_add_u32 v{T+1}, v{T+1}, v{T}
    s_lshr_b32 s{sT}, s{sW}, 1
    s_mul_i32 s{sT}, s{sT}, 520
    s_and_b32 s{sT+1}, s{sW}, 1
    s_lshl_b32 s{sT+1}, s{sT+1}, 1
    s_add_u32 s{sT}, s{sT}, s{sT+1}
    s_add_u32 s{sT+1}, s{sT}, {WSL}
    s_sub_u32 s{sT+2}, {WSL+3*520+2}, s{sT}
    v_add_u32 v{aWr}, s{sT+1}, v{T+1}
    v_add_u32 v{aWr+1}, s{sT+2}, v{T+1}''')
    a(f'''v_and_b32 v{T}, 7, v{vJ}
    v_lshl_add_u32 v{T}, v{vG}, 5, v{T}
    v_mul_u32_u24 v{T}, 272, v{T}
    v_lshl_add_u32 v{T}, v{T+5}, 3, v{T}
    s_lshl_b32 s{sT}, s{sW}, 4
    s_add_u32 s{sT}, s{sT}, {O2}
    v_add_u32 v{aO2w}, s{sT}, v{T}
    v_mul_u32_u24 v{T}, 272, v{vG}
    v_lshl_add_u32 v{T}, v{vJ}, 4, v{T}
    s_mul_i32 s{sT}, s{sW}, {16*272}
    s_add_u32 s{sT}, s{sT}, {O2}
    v_add_u32 v{aO2r}, s{sT}, v{T}
    s_lshl_b32 s{sT}, s{sW}, 4
    v_add_u32 v{T}, s{sT}, v{vL}
    v_mul_u32_u24 v{aFl}, {FLS}, v{T}
    v_readfirstlane_b32 s{sNONCE}, v{aNon}''')
    SC = 1.0/(2048*512)/2*DG/1.00268
    TH = C1+40
    a(f'''s_add_u32 s{sT}, s{sKB}, s{sW}
    v_lshl_add_u32 v{T}, v{T+6}, 5, s{sT}
    v_cvt_f32_u32 v{T}, v{T}
    v_mul_f32 v{T}, {fh(1/1024)}, v{T}
    v_add_f32 v{T+1}, {fh(16/1024)}, v{T}
    v_sin_f32 v{TH}, v{T}
    v_cos_f32 v{TH+1}, v{T}
    v_sin_f32 v{TH+2}, v{T+1}
    v_cos_f32 v{TH+3}, v{T+1}''')
    for k in range(4): a(f'v_mul_f32 v{TH+k}, {fh(SC)}, v{TH+k}')
    for q in range(4):
        for i in range(4):
            a(f'ds_write_b32 v{aWw}, v{WL+4*q+i} offset:{4*(2080*q+130*i)}')
    a(f'''v_lshl_or_b32 v{SX}, v{SX+1}, 16, v{SX}
    v_and_b32 v{T}, 3, v{vL}
    v_mul_u32_u24 v{T}, {2080-512}, v{T}
    v_sub_u32 v{T}, v{aWw}, v{T}
    ds_write_b32 v{T}, v{SX} offset:{SPL-WSL}''')
    stamp(a, 'wst', 2)
    a(f'''s_lshl_b32 s{sT+1}, s{sW}, 12
    s_lshl_b32 s{sT+2}, s{sW}, 1
    s_and_b32 s{sT+2}, s{sT+2}, 12''')
    if SC1: a(f's_lshl_b32 s{sT+3}, s2, 15\ns_add_u32 s{sT+3}, s{sT+3}, s{sT+1}')
    else: a(f's_lshl_b32 s{sT+3}, s{sW}, 19')
    a(f'''s_add_u32 s{sT+1}, s{sT+1}, s{sT+2}
    s_add_u32 s{sT+1}, s{sT+1}, {I2}
    s_mov_b32 m0, s{sT+1}''')
    poll(a, FL1, aFl, T)
    stamp(a, 5)
    stamp(a, 'poll', 2)
    for q in range(4):
        a(f'buffer_load_dwordx4 v{aDma+(q&1)}, {srd(sWS)}, s{sT+3} offen sc1 lds')
        a.tag_vm('dma')
        if q < 3: a(f's_add_u32 s{sT+3}, s{sT+3}, {1024 if SC1 else 4*32768}\ns_add_u32 m0, m0, 1024')
    a('s_waitcnt lgkmcnt(0)\ns_barrier')
    stamp(a, 'barC', 2)
    a(f's_or_b32 s{sT}, s{sW}, s2')
    with a.cond('s_cbranch_scc1'):
        a(f'''s_mov_b32 s{sT}, {GEN}
        s_mov_b64 exec, 1
        buffer_store_dword v{aNon}, off, {srd(sWS)}, s{sT} sc1
        s_mov_b64 exec, -1''')
    raw = lambda t, r, q: ACC + 16*t + 4*r + q
    for t in range(2):
        for r in range(4):
            for q in range(4):
                a(f'ds_read_u16_d16_hi v{raw(t,r,q)}, v{aWr+(q>>1)} offset:{4*(2080*q+520*t+32*r)}')
    a(f's_or_b32 s{sT}, s{sW}, s{sB}')
    with a.cond('s_cbranch_scc1'):
        a(f'''v_and_b32 v{T}, 31, v{vL}
        v_lshlrev_b32 v{T}, 2, v{T}
        v_add_u32 v{T}, {SPL}, v{T}''')
        for r in range(4):
            for k in range(3): a(f'ds_read_b32 v{SP+6*r+2*k+1}, v{T} offset:{512*k+128*r}')
        for r in range(4):
            for k in range(3):
                a(f'v_lshlrev_b32 v{SP+6*r+2*k}, 16, v{SP+6*r+2*k+1}\nv_and_b32 v{SP+6*r+2*k+1}, 0xffff0000, v{SP+6*r+2*k+1}')
        a('s_mov_b32 exec_hi, 0')
        for r in range(4):
            a(f'''v_add_f32 v{raw(0,r,0)}, v{raw(0,r,0)}, v{SP+6*r}
            v_sub_f32 v{raw(0,r,1)}, v{raw(0,r,1)}, v{SP+6*r+1}
            v_add_f32 v{raw(0,r,2)}, v{raw(0,r,2)}, v{SP+6*r+2}
            v_sub_f32 v{raw(0,r,3)}, v{raw(0,r,3)}, v{SP+6*r+3}''')
            for q in range(4): a(f'v_mul_f32 v{raw(0,r,q)}, 0.5, v{raw(0,r,q)}')
        a('s_mov_b64 exec, -1')
    co = lambda t, r, k: CO + 24*t + 6*r + k
    for t in range(2):
        for r in range(4):
            a0, b0, a1, b1 = [raw(t,r,q) for q in range(4)]
            a(f'''v_add_f32 v{T}, v{a0}, v{a1}
            v_sub_f32 v{T+1}, v{b0}, v{b1}
            v_sub_f32 v{T+2}, v{a0}, v{a1}
            v_add_f32 v{T+3}, v{b0}, v{b1}
            v_mul_f32 v{T}, {fh(SC)}, v{T}
            v_mul_f32 v{T+1}, {fh(SC)}, v{T+1}
            v_fma_f32 v{co(t,r,0)}, -v{T+2}, v{TH+2*t}, v{T}
            v_fma_f32 v{co(t,r,1)}, -v{T+3}, v{TH+2*t}, v{T+1}
            v_fma_f32 v{co(t,r,2)}, v{T+2}, v{TH+2*t}, v{T}
            v_fma_f32 v{co(t,r,3)}, v{T+3}, v{TH+2*t}, v{T+1}
            v_mul_f32 v{co(t,r,4)}, v{T+2}, v{TH+2*t+1}
            v_mul_f32 v{co(t,r,5)}, v{T+3}, v{TH+2*t+1}''')
    a(f'''s_or_b32 s{sT}, s{sW}, s{sB}
    s_cselect_b32 s{sSPEC}, 0, s{sSPEC}
    s_cmp_eq_u32 s{sSPEC}, 0''')
    aMir = C1+44
    with a.cond('s_cbranch_scc1'):
        a('s_mov_b32 exec_hi, 0')
        for r in range(4):
            a(f'v_mul_f32 v{co(0,r,2)}, {fh(2*SC)}, v{SP+6*r+4}\nv_mul_f32 v{co(0,r,3)}, {fh(2*SC)}, v{SP+6*r+5}')
        a('s_mov_b64 exec, -1')
        a(f'''v_and_b32 v{T}, 1, v{vG}
        v_lshl_add_u32 v{T}, v{T}, 6, v{vJ}
        v_lshlrev_b32 v{aMir}, 3, v{T}
        v_add_u32 v{aMir}, {MIR}, v{aMir}
        s_cmp_eq_u32 s{sA}, 0
        s_cselect_b32 s{sT}, 0, -1''')
        for r in range(4):
            a(f'''v_add_u32 v{T+1}, {16*r}, v{T}
            v_sub_u32 v{T+1}, s{sT}, v{T+1}
            v_and_b32 v{T+1}, 127, v{T+1}
            v_lshlrev_b32 v{T+1}, 3, v{T+1}
            v_add_u32 v{aMir+1+r}, {MIR}, v{T+1}''')
    stamp(a, 'coef', 2)
    a.wait_vm_tag('dma')
    stamp(a, 'dma', 2)
    a('s_barrier')
    stamp(a, 6)
    stamp(a, 'bar', 2)
    for t in range(2):
        for pq in range(2):
            for h in range(2):
                a(f'ds_read2st64_b32 {vr(X+4*(2*t+pq)+2*h,2)}, v{aI2+2*t+pq} offset0:{16*h} offset1:{16*h+8}')
    for tile in range(4):
        for part in range(2):
            a(f'{MF16} {vr(acc(tile,part),4)}, {vr(X+4*tile,4)}, {vr(M1+4*part,4)}, 0')
    stamp(a, 's1', 2)
    for tile in range(4):
        twiddle(a, X+4*tile, acc(tile,0), acc(tile,1), T1, T)
    for tile in range(4):
        for part in range(2):
            a(f'{MF16} {vr(acc(tile,part),4)}, {vr(M8+4*part,4)}, {vr(X+4*tile,4)}, 0')
    def mult(t, YP, YQ):
        Pr, Pi, Qr, Qi = acc(2*t,0), acc(2*t,1), acc(2*t+1,0), acc(2*t+1,1)
        for r0 in (0, 2):
            rs = (r0, r0+1); tm = lambda r, k: T + 4*(r-r0) + k
            for r in rs:
                a(f'''v_mul_f32 v{tm(r,0)}, v{co(t,r,0)}, v{Pr+r}
                v_mul_f32 v{tm(r,1)}, v{co(t,r,0)}, v{Pi+r}
                v_mul_f32 v{tm(r,2)}, v{co(t,r,2)}, v{Qr+r}
                v_mul_f32 v{tm(r,3)}, v{co(t,r,2)}, v{Qi+r}''')
            for r in rs:
                a(f'''v_fma_f32 v{tm(r,0)}, -v{co(t,r,1)}, v{Pi+r}, v{tm(r,0)}
                v_fmac_f32 v{tm(r,1)}, v{co(t,r,1)}, v{Pr+r}
                v_fma_f32 v{tm(r,2)}, -v{co(t,r,3)}, v{Qi+r}, v{tm(r,2)}
                v_fmac_f32 v{tm(r,3)}, v{co(t,r,3)}, v{Qr+r}''')
            for r in rs:
                a(f'''v_fma_f32 v{tm(r,0)}, -v{co(t,r,4)}, v{YP[1]+r}, v{tm(r,0)}
                v_fmac_f32 v{tm(r,1)}, v{co(t,r,4)}, v{YP[0]+r}
                v_fmac_f32 v{tm(r,2)}, v{co(t,r,4)}, v{YQ[1]+r}
                v_fma_f32 v{tm(r,3)}, -v{co(t,r,4)}, v{YQ[0]+r}, v{tm(r,3)}''')
            for r in rs:
                a(f'''v_fma_f32 v{tm(r,0)}, -v{co(t,r,5)}, v{YP[0]+r}, v{tm(r,0)}
                v_fma_f32 v{tm(r,1)}, -v{co(t,r,5)}, v{YP[1]+r}, v{tm(r,1)}
                v_fmac_f32 v{tm(r,2)}, v{co(t,r,5)}, v{YQ[0]+r}
                v_fmac_f32 v{tm(r,3)}, v{co(t,r,5)}, v{YQ[1]+r}''')
            for r in rs:
                pack(a, X+8*t+r, tm(r,1), tm(r,0))
                pack(a, X+8*t+4+r, tm(r,3), tm(r,2))
    def mult_norm(t): mult(t, (acc(2*t+1,0), acc(2*t+1,1)), (acc(2*t,0), acc(2*t,1)))
    def mult_spec():
        YP, YQ = L, L+8
        a('s_mov_b32 exec_hi, 0')
        for r in range(4):
            a(f'ds_write2_b32 v{aMir}, v{acc(0,0)+r}, v{acc(0,1)+r} offset0:{32*r} offset1:{32*r+1}')
        for r in range(4):
            a(f'ds_read_b64 {vr(T+2*r,2)}, v{aMir+1+r}')
        a('s_mov_b64 exec, -1')
        for k in range(8):
            a(f'v_mov_b32 v{YP+k}, v{acc(1,0)+k}\nv_mov_b32 v{YQ+k}, v{acc(0,0)+k}')
        a('s_mov_b32 exec_hi, 0')
        for r in range(4):
            a(f'v_mov_b32 v{YP+r}, v{T+2*r}\nv_xor_b32 v{YP+4+r}, 0x80000000, v{T+2*r+1}')
        for k in range(8): a(f'v_mov_b32 v{YQ+k}, 0')
        a('s_mov_b64 exec, -1')
        mult(0, (YP, YP+4), (YQ, YQ+4))
    def istage1(t):
        for tile in (2*t, 2*t+1):
            for part in range(2):
                a(f'{MF16} {vr(acc(tile,part),4)}, {vr(X+4*tile,4)}, {vr(M8+4*part,4)}, 0')
    stamp(a, 's2', 2)
    a(f's_cmp_lg_u32 s{sSPEC}, 0')
    a.ifelse('s_cbranch_scc1', lambda: mult_norm(0), mult_spec)
    stamp(a, 'm0', 2)
    mult_norm(1)
    istage1(0)
    istage1(1)
    stamp(a, 'm1', 2)
    for tile in range(4):
        twiddle(a, X+4*tile, acc(tile,0), acc(tile,1), T1i, T)
    for tile in (0, 2, 1, 3):
        for part in range(2):
            a(f'{MF16} {vr(acc(tile,part),4)}, {vr(M1i+4*part,4)}, {vr(X+4*tile,4)}, 0')
    stamp(a, 'i2', 2)
    for pq in range(2):
        for r in range(4):
            for t in range(2):
                pack(a, L+8*pq+2*r+t, acc(2*t+pq,0)+r, acc(2*t+pq,1)+r)
            a(f'ds_write_b64 v{aO2w}, {vr(L+8*pq+2*r,2)} offset:{8*272*r+128*pq}')
    a(f's_lshl_b32 s{sT}, s{sW}, 19\ns_add_u32 s{sT}, s{sT}, {Z2}')
    stamp(a, 'wr', 2)
    a('s_waitcnt lgkmcnt(0)\ns_barrier')
    stamp(a, 'bar', 2)
    for q in range(4):
        a(f'ds_read_b128 {vr(X+4*q,4)}, v{aO2r} offset:{4*272*q}')
    for q in range(4):
        a(f'buffer_store_dwordx4 {vr(X+4*q,4)}, v{aZ2}, {srd(sWS)}, s{sT} offen {STF}')
        if q < 3: a(f's_add_u32 s{sT}, s{sT}, {4*32768}')
    stamp(a, 7)
    stamp(a, 'st', 2)
    a(f's_mul_i32 s{sT}, s2, {FLS}\ns_add_u32 s{sT}, s{sT}, {FL2}')
    a('s_waitcnt vmcnt(0)\ns_barrier')
    stamp(a, 8)
    stamp(a, 'drain', 2)
    a(f's_cmp_lg_u32 s{sW}, 0')
    with a.cond('s_cbranch_scc1'):
        a(f'''s_mov_b64 exec, 1
        buffer_store_dword v{aNon}, off, {srd(sWS)}, s{sT} sc1
        s_mov_b64 exec, -1''')
    a(f'''v_add_f32 v{T}, v{fJ}, v{fJ}
    v_add_f32 v{T+1}, 1.0, v{T}
    v_mul_f32 v{T+2}, 0x3e000000, v{fG}
    v_mul_f32 v{AR}, v{T}, v{T+2}
    v_mul_f32 v{AR+4}, v{T+1}, v{T+2}''')
    args4(a, AR, T, AR, 1/32); args4(a, AR+4, T+1, AR+4, 1/32)
    matrix(a, MD2, MD2+4, [AR+m for m in range(4)], ACC)
    matrix(a, MD2+8, MD2+12, [AR+4+m for m in range(4)], ACC+8)
    for m in range(8): a(f'v_xor_b32 v{MD2+16+m}, 0x80008000, v{MD2+8+m}')
    a(f'''v_mul_f32 v{T+2}, {fh(1/128)}, v{fG}
    v_mul_f32 v{AR}, v{T}, v{T+2}
    v_mul_f32 v{AR+4}, v{T+1}, v{T+2}''')
    args4(a, AR, T, AR, 1/512); args4(a, AR+4, T+1, AR+4, 1/512)
    trig4(a, [AR+m for m in range(8)], TW)
    scale(a, TW, 16, DG*DG)
    a(f'''v_mul_f32 v{T+2}, 0x3e000000, v{fG}
    v_mul_f32 v{AR}, v{fJ}, v{T+2}
    v_fmamk_f32 v{AR+2}, v{fJ}, {fh(1/16)}, v{AR}
    v_mul_f32 v{T+3}, 0.5, v{fJ}
    v_cmp_eq_u32 vcc, 0, v{vG}
    v_cndmask_b32 v{AR+1}, v{AR}, v{T+3}, vcc
    v_mov_b32 v{T+4}, 0x80008000
    v_cndmask_b32 v{T+4}, v{T+4}, 0, vcc''')
    matrix(a, MR+4, MR, [AR, AR+1, AR+2], ACC)
    a(f'''v_mov_b32 v{MR+3}, v{MR+2}
    v_xor_b32 v{MR+7}, 0x80008000, v{MR+6}
    v_xor_b32 v{MR+5}, v{T+4}, v{MR+5}''')
    aZ3, aE3w, aE3r, aOut = aX, aE1w, aE1r, aZ
    a(f'''s_lshl_b32 s{sT}, s{sW}, 12
    s_lshl_b32 s{sT+1}, s2, 15
    s_add_u32 s{sT+1}, s{sT+1}, {Z2}
    s_add_u32 s{sT}, s{sT}, s{sT+1}
    v_lshl_add_u32 v{aZ3}, v{vL}, 4, s{sT}
    v_mul_u32_u24 v{T}, {4*2312}, v{vG}
    v_mul_u32_u24 v{T+1}, 72, v{vJ}
    s_lshl_b32 s{sT}, s{sW}, 3
    v_add3_u32 v{aE3w}, v{T}, v{T+1}, s{sT}
    v_lshrrev_b32 v{T}, 3, v{vJ}
    v_mul_u32_u24 v{T}, 2312, v{T}
    v_and_b32 v{T+1}, 7, v{vJ}
    v_mul_u32_u24 v{T+1}, 144, v{T+1}
    v_lshl_add_u32 v{T+1}, v{vG}, 4, v{T+1}
    s_mul_i32 s{sT}, s{sW}, {2*2312}
    v_add3_u32 v{aE3r}, v{T}, v{T+1}, s{sT}
    s_lshl_b32 s{sT}, s{sW}, 8
    v_lshlrev_b32 v{T}, 21, v{vG}
    v_lshl_add_u32 v{T}, v{vJ}, 4, v{T}
    v_add_u32 v{aOut}, s{sT}, v{T}
    s_lshl_b32 s{sM}, s2, 12
    s_add_u32 s{sM+1}, s{sM}, {128*4096}
    s_add_u32 s{sM+2}, s{sM}, {2*128*4096}
    s_add_u32 s{sM+3}, s{sM}, {3*128*4096}
    s_cmp_lg_u32 s{sW}, 0''')
    with a.cond('s_cbranch_scc1'):
        for m in range(4):
            a(f'''v_lshl_or_b32 v{T}, v{vG}, 2, {m}
            v_lshl_add_u32 v{T}, v{T}, 4, v{vJ}
            v_sub_u32 v{T}, 256, v{T}
            v_and_b32 v{T+1}, 0xc0, v{T}
            v_and_b32 v{T+2}, 15, v{T}
            v_lshl_or_b32 v{T+1}, v{T+2}, 2, v{T+1}
            v_bfe_u32 v{T+2}, v{T}, 4, 2
            v_or_b32 v{T+1}, v{T+1}, v{T+2}
            v_lshlrev_b32 v{T+1}, 2, v{T+1}
            v_add_u32 v{aSp+m}, s{sT+1}, v{T+1}''')
    a(f'''v_lshl_add_u32 v{T}, v{vL}, 3, s{sW}
    v_mul_u32_u24 v{aFl}, {FLS}, v{T}''')
    poll(a, FL2, aFl, T)
    stamp(a, 9)
    def ld3(wh, t):
        a(f'buffer_load_dwordx4 {vr(X+8*wh+4*t,4)}, v{aZ3}, {srd(sWS)}, 0 offen offset:{2048*wh+1024*t} sc1')
    def norm3():
        for wh in range(2):
            ld3(wh, 0); ld3(wh, 1)
    def spec3():
        for wh in range(2):
            ld3(wh, 0)
            for m in range(4):
                a(f'buffer_load_dword v{X+8*wh+4+m}, v{aSp+m}, {srd(sWS)}, 0 offen offset:{2048*wh+1024} sc1')
        for wh in range(2):
            for m in range(4): a(f'v_xor_b32 v{X+8*wh+4+m}, 0x8000, v{X+8*wh+4+m}')
    a(f's_cmp_eq_u32 s{sW}, 0')
    a.ifelse('s_cbranch_scc1', norm3, spec3)
    for wh in range(2):
        for N in range(2):
            for part in range(2):
                a(f'{MF16} {vr(acc(2*wh+N,part),4)}, {vr(X+8*wh,4)}, {vr(MD2+8*N+4*part,4)}, 0')
        if wh == 0: stamp(a, 10)
        for N in range(2):
            for part in range(2):
                a(f'{MF16} {vr(acc(2*wh+N,part),4)}, {vr(X+8*wh+4,4)}, {vr(MD2+16*N+4*part,4)}, {vr(acc(2*wh+N,part),4)}')
    for tile in range(4):
        twiddle(a, L+4*tile, acc(tile,0), acc(tile,1), TW+8*(tile&1), T)
    for tile in (0, 2, 1, 3):
        for part in range(2):
            a(f'{MF16} {vr(acc(tile,part),4)}, {vr(MD1+4*part,4)}, {vr(L+4*tile,4)}, 0')
    for N in range(2):
        for r in range(4):
            for wh in range(2):
                pack(a, X+8*N+2*r+wh, acc(2*wh+N,0)+r, acc(2*wh+N,1)+r)
            a(f'ds_write_b64 v{aE3w}, {vr(X+8*N+2*r,2)} offset:{E3+2312*r+1152*N}')
    a('s_waitcnt lgkmcnt(0)\ns_barrier')
    for t in range(4):
        for h in range(2):
            a(f'ds_read_b64 {vr(L+4*t+2*h,2)}, v{aE3r} offset:{E3+1152*(t&1)+72*(t>>1)+8*h}')
    for t in range(4):
        for part in range(2):
            a(f'{MF16} {vr(acc(t,part),4)}, {vr(MR+4*part,4)}, {vr(L+4*t,4)}, 0')
    for r in range(4):
        for t in range(4):
            a(f'v_cvt_pk_bf16_f32 v{X+4*r+t}, v{acc(t,0)+r}, v{acc(t,1)+r}')
        a(f'buffer_store_dwordx4 {vr(X+4*r,4)}, v{aOut}, {srd(sOUT)}, s{sM+r} offen' + {0: '', 1: ' sc1', 2: ' nt', 3: ' sc0 sc1'}[OPT.get('outf', 0)])
    stamp(a, 11)
    if OPT['stamps']:
        a('s_waitcnt vmcnt(0)')
        stamp(a, 'end')
        stamps_out(a, len(NAMES['A'])+1, T, {k: k for k in range(13)})
    calib(a)
    a('s_endpgm')
    a.label('L_A_end')
    a.reset_counters()

P_ROWS = list(range(8)) + [256,258,260,262] + [512,516,768,772] + [1024,1280,1536,1792,1800]
def d_rows():
    h0 = list(range(8)) + [512,516,516] + [1024,1024] + [1536,1536,1536]
    h1 = [256,256,258,260,260,260,262,262] + [768,772,772] + [1280,1280] + [1792,1800,1800]
    return h0, h1
def place_rows():
    h0, h1 = d_rows()
    row = lambda i: (h0, h1)[(i >> 2) & 1][4*(i >> 3) + (i & 3)]
    G1 = {row(i) for i in itertools.chain(range(0,4), range(12,16), range(20,28))}
    G2 = {row(i) for i in itertools.chain(range(4,12), range(16,20), range(28,32))}
    both = sorted(G1 & G2); o1 = sorted(G1 - G2); o2 = sorted(G2 - G1)
    phys = {}
    pair = list(range(5)); single = list(range(37, 48))
    while pair:
        r = pair.pop(0); phys[o1.pop(0)] = 32 + r; phys[o2.pop(0)] = 48 + r
    for l0 in both + o1 + o2: phys[l0] = single.pop(0)
    assert sorted(phys) == sorted(P_ROWS) and len(set(phys.values())) == len(phys) and max(phys.values()) < 53
    for G in (G1, G2): assert len({phys[x] % 16 for x in G}) == len(G)
    return phys, [phys[row(i)] for i in range(32)]

def gen_B(a):
    vL, vJ, vG, vJ32 = 1, 2, 3, 4
    T = 5
    UL = 16
    PR = 32
    D = 40
    FR = 56
    W_ = 120
    ACC = 160
    BAND = 192
    GA = 200
    AD = 232
    aTA, aTB, aKw, aKe, aK3z, aK3w, aUw, aUz, aKA, aUB, aK3r, aSw, aSr, aOut, mTop, mBot = range(AD, AD+16)
    vDT, vDS = 248, 249
    RP = 14656
    KC = 64; KP = 2240; K3 = KC + 4*KP; ST = K3 + 1536; SP_ = RP; STB = 2048; U = 8*RP; UP = 4608
    assert ST + 2*STB <= RP and U + 8*UP <= LDS_BYTES
    TP = 272
    sP = 28 + 12
    sD0 = 56; sSE, sSO = 57, 58; sH = 59; sH2 = 36
    phys, rowmap = place_rows()

    ROLE[0] = 'B'
    a.label('L_B')
    prefetch_code(a, 'L_B', 'L_B_end', 250)
    a(f'''s_load_dwordx4 s[{sP}:{sP+3}], s[0:1], 32
    s_load_dwordx4 s[{sP+4}:{sP+7}], s[0:1], 48
    s_load_dwordx4 s[{sP+8}:{sP+11}], s[0:1], 64
    s_load_dwordx4 s[{sP+12}:{sP+15}], s[0:1], 80
    s_load_dwordx2 s[{sX}:{sX+1}], s[0:1], 24
    s_load_dwordx2 s[{sOUT}:{sOUT+1}], s[0:1], 96
    s_load_dwordx2 s[{sWS}:{sWS+1}], s[0:1], 112
    s_mov_b32 s{sWS+2}, {WS_SIZE}
    s_mov_b32 s{sWS+3}, 0x20000
    s_mov_b32 s{sX+2}, 4194304
    s_mov_b32 s{sX+3}, 0x20000
    s_mov_b32 s{sOUT+2}, 8388608
    s_mov_b32 s{sOUT+3}, 0x20000
    v_lshrrev_b32 v{T+2}, 6, v0
    v_and_b32 v{vL}, 63, v0
    v_readfirstlane_b32 s{sW}, v{T+2}
    v_and_b32 v{vJ}, 15, v0
    v_bfe_u32 v{vG}, v0, 4, 2
    v_and_b32 v{vJ32}, 31, v0
    s_and_b32 s{sT}, s2, 7
    s_lshl_b32 s{sT}, s{sT}, 7
    s_bfe_u32 s{sT+1}, s2, 0x40003
    s_lshl_b32 s{sT+2}, s{sT+1}, 3
    s_add_u32 s{sD0}, s{sT}, s{sT+2}
    s_add_u32 s{sT}, s{sD0}, s{sW}
    s_lshl_b32 s{sT+2}, s{sT}, 8
    s_lshl_b32 s{sT}, s{sT}, 1
    v_lshl_add_u32 v{T+2}, v{vL}, 2, s{sT+2}
    v_mov_b32 v{T+3}, s{sT}
    s_and_b32 s{sT+1}, s{sT+1}, 7
    s_lshl_b32 s{sT+1}, s{sT+1}, 5
    v_add_u32 v{T+4}, s{sT+1}, v0
    v_and_b32 v{T+4}, 0xff, v{T+4}
    s_lshl_b32 s{sT}, s{sD0}, 1
    v_lshl_add_u32 v{T+5}, v{T+4}, 13, s{sT}
    s_mov_b32 s{sH}, 0x200000
    s_mov_b32 s{sH2}, 0x1000
    s_mov_b32 s{sH2+1}, 0x201000''')
    a(f'global_load_short_d16_hi v{PR+6}, v{T+3}, s[{sP+12}:{sP+13}]')
    for k in range(6):
        a(f'global_load_dword v{PR+k}, v{T+2}, s[{sP+2*k}:{sP+2*k+1}]')
    a(f'global_load_short_d16_hi v{vDS}, v{T+3}, s[{sP+14}:{sP+15}]')
    aU = 252
    a(f'v_mov_b32 v{aU}, v{T+5}')
    ULh = (ACC+16, UL)
    def uload(k):
        hf, row = k >> 2, k & 3
        so = (('0', f's{sH2}'), (f's{sH}', f's{sH2+1}'))[hf][row >> 1]
        return f'buffer_load_dwordx4 {vr(ULh[hf]+4*row,4)}, v{aU}, {srd(sX)}, {so} offen offset:{2048*(row&1)}'
    stamp(a, 1)
    a(f'''v_lshlrev_b32 v{aUw}, 3, v{T+4}
    v_add_u32 v{aUw}, {U+512}, v{aUw}
    s_mul_i32 s{sT}, s{sW}, {UP}
    s_add_u32 s{sT}, s{sT}, {U}
    v_lshl_add_u32 v{aUz}, v{vL}, 3, s{sT}
    v_lshlrev_b32 v{T}, 4, v{vG}
    v_lshl_add_u32 v{T}, v{vJ}, 5, v{T}
    v_add_u32 v{aUB}, s{sT}, v{T}
    v_mov_b32 v6, 0
    v_mov_b32 v7, 0
    ds_write_b64 v{aUz}, v[6:7]
    s_mul_i32 s{sT}, s{sW}, {RP}
    s_mov_b32 m0, s{sT}
    v_lshrrev_b32 v{T+1}, 5, v{vL}
    v_lshl_add_u32 v{T+2}, v{T+1}, 4, s{sT}
    v_mul_u32_u24 v{aTB}, {TP}, v{vJ32}
    v_add_u32 v{aTB}, v{aTB}, v{T+2}''')
    words = [sum((rowmap[4*k+b]) << (8*b) for b in range(4)) for k in range(8)]
    a(f'v_lshrrev_b32 v{T+3}, 2, v{vJ32}\nv_mov_b32 v{T+4}, {hex(words[0])}')
    for k in range(1, 8):
        a(f'v_cmp_eq_u32 vcc, {k}, v{T+3}\nv_mov_b32 v{T+5}, {hex(words[k])}\nv_cndmask_b32 v{T+4}, v{T+4}, v{T+5}, vcc')
    a(f'''v_and_b32 v{T+3}, 3, v{vL}
    v_lshlrev_b32 v{T+5}, 3, v{T+3}
    v_bfe_u32 v{T+4}, v{T+4}, v{T+5}, 8
    v_mul_u32_u24 v{aTA}, {TP}, v{T+4}
    v_add_u32 v{aTA}, v{aTA}, v{T+2}''')
    a(f'''s_add_u32 s{sT}, s{sT}, {KC}
    v_lshlrev_b32 v{T+4}, 9, v{T+1}
    v_lshl_add_u32 v{T+4}, v{vJ32}, 4, v{T+4}
    v_add_u32 v{aKw}, s{sT}, v{T+4}
    v_mul_u32_u24 v{T+4}, {KP}, v{vG}
    v_lshl_add_u32 v{T+4}, v{vJ}, 2, v{T+4}
    v_add_u32 v{aKe}, s{sT}, v{T+4}
    v_bfe_u32 v{T+5}, v{vL}, 2, 2
    v_mul_u32_u24 v{T+4}, {KP}, v{T+5}
    v_lshl_add_u32 v{T+4}, v{T+3}, 3, v{T+4}
    v_lshlrev_b32 v{T+6}, 4, v{vG}
    v_sub_u32 v{T+4}, v{T+4}, v{T+6}
    v_add_u32 v{aKA}, s{sT}, v{T+4}
    s_add_u32 s{sT}, s{sT}, {K3-KC}
    v_lshrrev_b32 v{T+4}, 3, v{vL}
    v_mul_u32_u24 v{T+4}, 192, v{T+4}
    v_and_b32 v{T+6}, 7, v{vL}
    v_lshl_add_u32 v{T+4}, v{T+6}, 3, v{T+4}
    v_add_u32 v{aK3z}, s{sT}, v{T+4}
    v_lshlrev_b32 v{T+4}, 5, v{T+1}
    v_and_b32 v{T+6}, 30, v{vL}
    v_add3_u32 v{aK3w}, v{T+4}, v{T+6}, s{sT}
    v_and_b32 v{T+6}, 1, v{vL}
    v_lshlrev_b32 v{T+6}, 6, v{T+6}
    v_sub_u32 v{aK3w}, v{aK3w}, v{T+6}
    v_mul_u32_u24 v{T+4}, 192, v{T+5}
    v_lshl_add_u32 v{T+4}, v{T+3}, 3, v{T+4}
    v_lshlrev_b32 v{T+6}, 3, v{vG}
    v_sub_u32 v{T+4}, v{T+4}, v{T+6}
    v_add_u32 v{aK3r}, s{sT}, v{T+4}
    s_add_u32 s{sT}, s{sT}, {ST-K3}
    v_lshlrev_b32 v{T+4}, 5, v{vJ}
    v_lshl_add_u32 v{T+4}, v{vG}, 3, v{T+4}
    v_add_u32 v{aSw}, s{sT}, v{T+4}
    s_lshl_b32 s{sT}, s{sW}, 8
    s_add_u32 s{sT}, s{sT}, {ST}
    v_mul_u32_u24 v{T+4}, {SP_}, v{T+5}
    v_lshl_add_u32 v{T+4}, v{T+3}, 3, v{T+4}
    v_lshl_add_u32 v{T+4}, v{vG}, 5, v{T+4}
    v_add_u32 v{aSr}, s{sT}, v{T+4}
    s_lshl_b32 s{sT}, s{sW}, 19
    s_lshl_b32 s{sT+1}, s{sD0}, 1
    s_add_u32 s{sT}, s{sT}, s{sT+1}
    s_add_u32 s{sT}, s{sT}, 2048
    v_lshl_add_u32 v{aOut}, v{vL}, 12, s{sT}
    s_mov_b32 s{sSE}, 0x05040100
    s_mov_b32 s{sSO}, 0x07060302''')
    a(f'''v_lshlrev_b32 v{T+4}, 1, v{vJ}
    v_sub_u32 v{T+4}, v{T+4}, v{vG}
    v_cmp_ge_i32 vcc, 4, v{T+4}
    v_mov_b32 v{T+6}, 0xffff
    v_cndmask_b32 v{mTop}, 0, v{T+6}, vcc
    v_cmp_ge_i32 vcc, 3, v{T+4}
    v_cndmask_b32 v{mTop}, v{mTop}, -1, vcc''')
    for p, (msk, sh) in enumerate(((0x1ff, 4), (0x7f, 5))):
        a(f'''v_add_u32 v{T+4}, {sh}, v{vJ}
        v_mov_b32 v{T+6}, {msk}
        v_lshlrev_b32 v{T+4}, v{T+4}, v{T+6}
        v_lshlrev_b32 v{T+6}, 3, v{vG}
        v_lshrrev_b32 v{T+4}, v{T+6}, v{T+4}''')
        for m in range(4):
            a(f'''v_bfe_i32 v{T+6}, v{T+4}, {2*m}, 1
            v_bfe_i32 v{T+7}, v{T+4}, {2*m+1}, 1
            v_and_b32 v{T+6}, 0x3f80, v{T+6}
            v_and_b32 v{T+7}, 0x3f800000, v{T+7}
            v_or_b32 v{BAND+4*p+m}, v{T+6}, v{T+7}''')
    L2E = math.log2(math.e)
    hi = struct.unpack('<f', struct.pack('<f', L2E))[0]; lo = L2E - hi
    a(f'''v_mul_f32 v{T}, {fh(hi)}, v{PR+6}
    v_mov_b32 v{T+2}, {fh(hi)}
    v_fma_f32 v{T+1}, v{PR+6}, v{T+2}, -v{T}
    v_fmamk_f32 v{T+1}, v{PR+6}, {fh(lo)}, v{T+1}
    v_exp_f32 v{T}, v{T}
    v_mul_f32 v{T+1}, {fh(math.log(2))}, v{T+1}
    v_fmac_f32 v{T}, v{T}, v{T+1}
    v_cvt_pk_bf16_f32 v{T}, v{T}, v{T}
    v_and_b32 v{vDT}, 0xffff0000, v{T}''')
    a(f'v_mov_b32 v{vDS}, v{vDS}')
    stamp(a, 2)
    stamp(a, 'dt', 3)

    ANC = (W_+6, ACC)
    def anchors(p):
        o = []
        e = o.append
        R = FR + 20*p
        Ar, Ai, Br, Bi, Cr, Ci = range(R, R+6)
        for k in range(6):
            if p == 0: e(f'v_lshlrev_b32 v{R+k}, 16, v{PR+k}')
            else: e(f'v_and_b32 v{R+k}, 0xffff0000, v{PR+k}')
        for k in range(4): e(f'v_mul_f32 v{R+k}, v{vDT}, v{R+k}')
        e(f'v_mul_f32 v{Ar}, {fh(L2E)}, v{Ar}')
        e(f'v_mul_f32 v{Ai}, {fh(1/(2*math.pi))}, v{Ai}')
        w1, w8, w128, w256, w2, w4, c = [ANC[p]+2*i for i in range(7)]
        tm = R+6
        ls = ((w8, 8), (w128, 128), (w1, 1), (w256, 256))
        for i, (w, l) in enumerate(ls):
            if l != 1:
                e(f'v_mul_f32 v{tm+3*i}, {fh(l)}, v{Ar}'); e(f'v_mul_f32 v{tm+3*i+1}, {fh(l)}, v{Ai}')
        for i, (w, l) in enumerate(ls): e(f'v_fract_f32 v{tm+3*i+1}, v{Ai if l == 1 else tm+3*i+1}')
        e(f'v_mul_f32 v{c}, v{Cr}, v{Br}'); e(f'v_mul_f32 v{c+1}, v{Cr}, v{Bi}')
        e(f'v_fma_f32 v{c}, -v{Ci}, v{Bi}, v{c}'); e(f'v_fmac_f32 v{c+1}, v{Ci}, v{Br}')
        e(f'v_mul_f32 v{c}, {fh(DG)}, v{c}'); e(f'v_mul_f32 v{c+1}, {fh(-DG)}, v{c+1}')
        for i, (w, l) in enumerate(ls): e(f'v_exp_f32 v{tm+3*i}, v{Ar if l == 1 else tm+3*i}')
        for i, (w, l) in enumerate(ls):
            e(f'v_cos_f32 v{w}, v{tm+3*i+1}'); e(f'v_sin_f32 v{w+1}, v{tm+3*i+1}')
        e(f'v_mul_f32 v{tm+3}, {fh(DG)}, v{tm+3}')
        for i, (w, l) in enumerate(ls):
            e(f'v_mul_f32 v{w}, v{w}, v{tm+3*i}'); e(f'v_mul_f32 v{w+1}, v{w+1}, v{tm+3*i}')
        return o
    def kpass(p):
        o = []
        R = W_
        w1, w8, w128, w256, w2, w4, c = [ANC[p]+2*i for i in range(7)]
        tm = R+20
        cv = [T+k for k in range(8)]; cvi = [0, 0]
        def put(row, re, im, neg):
            d = cv[2*cvi[0] + (cvi[1] & 1)]; cvi[1] += 1
            return [f'v_perm_b32 v{d}, v{im}, v{re}, s{sSO}', f'ds_write_addtid_b32 v{d} offset:{row*TP}']
        def cmul(d, x, y, cj=False):
            if cj: return [f'v_mul_f32 v{d}, v{x}, v{y}', f'v_mul_f32 v{d+1}, v{x+1}, v{y}',
                    f'v_fmac_f32 v{d}, v{x+1}, v{y+1}', f'v_fma_f32 v{d+1}, -v{x}, v{y+1}, v{d+1}']
            return [f'v_mul_f32 v{d}, v{x}, v{y}', f'v_mul_f32 v{d+1}, v{x}, v{y+1}',
                    f'v_fma_f32 v{d}, -v{x+1}, v{y+1}, v{d}', f'v_fmac_f32 v{d+1}, v{x+1}, v{y}']
        def sq(d, x):
            return [f'v_mul_f32 v{d}, v{x}, v{x}', f'v_add_f32 v{d+1}, v{x}, v{x}',
                    f'v_fma_f32 v{d}, -v{x+1}, v{x+1}, v{d}', f'v_mul_f32 v{d+1}, v{d+1}, v{x+1}']
        qa = [tm, tm+2]; qb = [tm+4, tm+6]; pa = [tm+8, tm+10]; pb = [R, R+2]; pc = [R+4, tm+12]
        chA = [[f'v_mov_b32 v{cv[1]}, 0x3f80', f'ds_write_addtid_b32 v{cv[1]} offset:0',
                f'v_mul_f32 v{qa[1]}, {fh(DG)}, v{w8}', f'v_mul_f32 v{qa[1]+1}, {fh(DG)}, v{w8+1}'] + put(1, qa[1], qa[1]+1, 0)]
        cur = qa[1]
        for j in range(2, 16):
            d = qa[j & 1]; chA.append(cmul(d, cur, w8) + put(j, d, d+1, 0)); cur = d
        cvi[0] = 1
        chB = [put(16, w128, w128+1, 0)]; cur = w128
        for j in range(17, 32):
            d = qb[j & 1]; chB.append(cmul(d, cur, w8) + put(j, d, d+1, 0)); cur = d
        cvi[0] = 2
        chC = [put(phys[0], c, c+1, 1), sq(w2, w1), sq(w4, w2)]; cur = c
        for l in range(1, 8):
            d = pa[l & 1]; chC.append(cmul(d, cur, w1, True) + put(phys[l], d, d+1, 1)); cur = d
        cvi[0] = 3
        chD = []; cur = c
        for k in range(1, 8):
            d = pb[k & 1]; chD.append(cmul(d, cur, w256, True) + put(phys[256*k], d, d+1, 1)); cur = d
            if k == 1: br = [(w2, 258), (w2, 260), (w2, 262)]
            elif k < 4: br = [(w4, 256*k+4)]
            elif k == 7: br = [(w8, 1800)]
            else: br = []
            c2 = d
            for n, (w, l) in enumerate(br):
                d2 = pc[n & 1]; chD.append(cmul(d2, c2, w, True) + put(phys[l], d2, d2+1, 1)); c2 = d2
        for st in chC[:3]: o += st
        chains = [chA, chB, chC[3:], chD]
        order = []
        idx = [0]*4; lens = [len(x) for x in chains]
        while any(idx[i] < lens[i] for i in range(4)):
            cand = sorted([i for i in range(4) if idx[i] < lens[i]], key=lambda i: -(lens[i]-idx[i]))[:2]
            steps = [chains[i][idx[i]] for i in cand]
            for i in cand: idx[i] += 1
            for tup in itertools.zip_longest(*steps):
                o += [x for x in tup if x]
        return o
    def treads():
        for s in range(8):
            a(f'ds_read_b128 {vr(FR+8*s,4)}, v{aTA} offset:{32*s}')
            a(f'ds_read_b128 {vr(FR+8*s+4,4)}, v{aTB} offset:{32*s}')
    def kmf(s, first):
        return f'{MF32} {vr(D,16)}, {vr(FR+8*s,4)}, {vr(FR+8*s+4,4)}, {"0" if first else vr(D,16)}'
    S = [x for pr in zip(anchors(0), anchors(1)) for x in pr]
    S.append(lambda: stamp(a, 'anc', 3))
    S += kpass(0)
    S.append(lambda: (stamp(a, 'p1', 3), treads()))
    p2 = kpass(1)
    pos = {OPT.get('mf0', 30) + OPT.get('mfs', 1)*s: s for s in range(8)}
    for k, x in enumerate(p2):
        if k in pos: S.append(kmf(pos[k], pos[k] == 0))
        S.append(x)
    u0, us = OPT.get('u0', 0), OPT.get('us', 90)
    upos = {u0 + us*k: k for k in range(8)}
    assert max(upos) < len(S)
    for k, x in enumerate(S):
        if k in upos:
            a(f's_cmp_gt_u32 s{sW}, 3')
            with a.cond('s_cbranch_scc1', 'old'): a(uload(upos[k]))
        if callable(x): x()
        else: a(x)
    treads()
    stamp(a, 3)
    stamp(a, 'p2', 3)
    for s in range(8): a(kmf(s, False))
    stamp(a, 'mf', 3)
    def uwrite(hf):
        a(f's_cmp_gt_u32 s{sW}, 3')
        with a.cond('s_cbranch_scc1', 'old'):
            for c in range(8):
                d = W_ + 2*c
                for h in range(2):
                    a(f'v_perm_b32 v{d+h}, v{ULh[hf]+8*h+4+(c>>1)}, v{ULh[hf]+8*h+(c>>1)}, s{sSO if c&1 else sSE}')
                a(f'ds_write_b64 v{aUw}, {vr(d,2)} offset:{UP*c+2048*hf}')
    a('v_mov_b32 v6, 0\nv_mov_b32 v7, 0')
    a(f'ds_write_b64 v{aK3z}, v[6:7]')
    a(f'ds_write_b32 v{aKe}, v6 offset:8')
    if OPT.get('uearly', 1): uwrite(0)
    stamp(a, 'uw', 3)
    G = lambda sl, r: FR + 16*sl + 4*r
    for k in (G(0,2), G(0,3), T+3): a(f'v_mov_b32 v{k}, 0')
    a('s_mov_b64 exec, 1')
    a(f'v_add_f32 v{D}, v{D}, v{vDS}')
    a('s_mov_b64 exec, -1')
    dpp = lambda d, x, ctl, rm=0xf: a(f'v_mov_b32_dpp v{d}, v{x} {ctl} row_mask:{hex(rm)} bank_mask:0xf')
    pk = lambda d, x, y: a(f'v_cvt_pk_bf16_f32 v{d}, v{x}, v{y}')
    dpp(D+7, D+8, 'wave_rol:1', 0x8); dpp(D+10, D+11, 'wave_rol:1', 0x8); dpp(D+12, D+13, 'wave_rol:1', 0x8)
    dpp(D+7, D, 'wave_shl:1', 0xc); dpp(D+10, D+8, 'wave_shl:1'); dpp(D+12, D+11, 'wave_shl:1'); dpp(D+14, D+13, 'wave_shl:1', 0x3)
    pk(T+4, D+11, D+11)
    k0 = [D+i for i in range(8)]; k1 = [D+8, D+8, D+8, D+9, D+9, D+9, D+10, D+10]
    for m in range(4): pk(G(0,0)+m, k0[2*m], k0[2*m+1])
    a(f'v_readlane_b32 s{sT+1}, v{T+4}, 0')
    a(f'ds_write_b128 v{aKw}, {vr(G(0,0),4)} offset:32')
    dpp(T+3, D+7, 'wave_shr:1')
    for m in range(1, 4): pk(G(0,1)+m, k0[2*m-1], k0[2*m])
    pk(G(0,1), T+3, D)
    for m in range(3): pk(G(0,2)+1+m, k0[2*m], k0[2*m+1])
    dpp(G(0,2), G(0,0)+3, 'wave_shr:1')
    a(f'ds_write_b128 v{aKw}, {vr(G(0,1),4)} offset:{KP+32}')
    for m in range(3): a(f'v_mov_b32 v{G(0,3)+1+m}, v{G(0,1)+m}')
    dpp(G(0,3), G(0,1)+3, 'wave_shr:1')
    a(f'ds_write_b128 v{aKw}, {vr(G(0,2),4)} offset:{2*KP+32}')
    for m in range(4): pk(G(1,0)+m, k1[2*m], k1[2*m+1])
    a(f'ds_write_b128 v{aKw}, {vr(G(0,3),4)} offset:{3*KP+32}')
    for m in range(1, 4): pk(G(1,1)+m, k1[2*m-1], k1[2*m])
    a(f'v_mov_b32 v{G(1,1)}, v{G(1,0)}')
    a(f'ds_write_b128 v{aKw}, {vr(G(1,0),4)} offset:{1024+32}')
    dpp(G(1,2), G(0,0)+3, 'wave_ror:1', 0x1); dpp(G(1,3), G(0,1)+3, 'wave_ror:1', 0x1)
    for m in range(3): a(f'v_mov_b32 v{G(1,2)+1+m}, v{G(1,0)+m}')
    a(f'ds_write_b128 v{aKw}, {vr(G(1,1),4)} offset:{KP+1024+32}')
    dpp(G(1,2), G(1,0)+3, 'wave_shr:1'); dpp(G(1,3), G(1,1)+3, 'wave_shr:1')
    for m in range(3): a(f'v_mov_b32 v{G(1,3)+1+m}, v{G(1,1)+m}')
    a(f'ds_write_b128 v{aKw}, {vr(G(1,2),4)} offset:{2*KP+1024+32}')
    a(f'v_readlane_b32 s{sT}, v{G(1,1)+3}, 63')
    a(f'v_and_b32 v{T+4}, s{sT+1}, v{mTop}')
    a(f'ds_write_b128 v{aKw}, {vr(G(1,3),4)} offset:{3*KP+1024+32}')
    pk(T+5, D+11, D+12); pk(T+6, D+13, D+14)
    a(f'v_writelane_b32 v{T+4}, s{sT}, 48')
    a('s_mov_b32 vcc_lo, 0xaaaaaaaa\ns_mov_b32 vcc_hi, 0xaaaaaaaa')
    dpp(T+7, T+6, 'quad_perm:[1,1,3,3]')
    a(f'ds_write_b32 v{aKe}, v{T+4} offset:{2*(1024+16)}')
    a(f'v_cndmask_b32 v{T+7}, v{T+7}, v{T+5}, vcc')
    for r in range(4):
        off = 32 + 64 + 194*r
        a(f'ds_write_b16_d16_hi v{aK3w}, v{T+7} offset:{off}')
        a(f'ds_write_b16 v{aK3w}, v{T+7} offset:{768+off}')
    stamp(a, 'kw', 3)
    if not OPT.get('uearly', 1): uwrite(0)
    a('s_waitcnt lgkmcnt(0)\ns_barrier')
    stamp(a, 4)
    stamp(a, 'bar2', 3)
    accv = lambda t: vr(ACC+4*t, 4)
    started = set()
    def mf(t, A, B):
        a(f'{MF16} {accv(t)}, {vr(A,4)}, {vr(B,4)}, {accv(t) if t in started else "0"}'); started.add(t)
    def ldA(dst, dl):
        for hf in range(2):
            a(f'ds_read_b64_tr_b16 {vr(dst+2*hf,2)}, v{aKA} offset:{32+32*dl-8*hf}')
    def ldB(dst, jb, r):
        a(f'ds_read_b128 {vr(dst,4)}, v{aUB} offset:{512+512*jb-32*r}')
    def conv_group(jbs, pairs, extra=None):
        nB = len(jbs)
        def regs(buf):
            base = FR + 48*buf
            return (lambda x: base + 4*x), (lambda jb: base + 16 + 4*jbs.index(jb))
        def loads(r, buf):
            fa, fb = regs(buf)
            seq = []
            for k in range(max(4, nB)):
                if k < nB: seq.append(('B', jbs[k]))
                if k < 4: seq.append(('A', k))
            return [(lambda kind=kind, v=v: ldB(fb(v), v, r) if kind == 'B' else ldA(fa(v), r+16*v)) for kind, v in seq]
        for f in loads(1, 0): f()
        for n, r in enumerate(range(1, 16, 2)):
            fa, fb = regs(n & 1)
            nxt = loads(r+2, (n+1) & 1) if r < 15 else []
            todo = list(pairs)
            k = 0
            for (x, t) in todo:
                mf(t, fa(x), fb(t-x))
                if k < len(nxt): nxt[k](); k += 1
            for f in nxt[k:]: f()
            if extra and r == 1: extra(fb)
    def extra65(fb):
        ldA(GA, 65)
        for t in range(4, 8): mf(t, GA, fb(t-4))
    pairs_a = sorted([(x, t) for t in range(4) for x in range(t+1)], key=lambda p: max(p[0], p[1]-p[0]))
    conv_group([0,1,2,3], pairs_a, extra65)
    stamp(a, 5)
    stamp(a, '1a', 3)
    for yb in range(4):
        for p in range(2):
            a(f'ds_read_b128 {vr(FR+8*yb+4*p,4)}, v{aUB} offset:{512+512*yb-48+16*p}')
    for dl in range(4):
        for s in range(2):
            a(f'ds_read_b64_tr_b16 {vr(FR+32+4*dl+2*s,2)}, v{aK3r} offset:{768*s+32*(dl+1)}')
    for yb in range(4):
        for p in range(2):
            a(f'{MF16} {vr(GA+8*yb+4*p,4)}, {vr(FR+8*yb+4*p,4)}, {vr(BAND+4*p,4)}, 0')
    def stage(h):
        for t in range(4):
            for k in range(2):
                a(f'v_cvt_pk_bf16_f32 v{W_+16+2*t+k}, v{ACC+16*h+4*t+2*k}, v{ACC+16*h+4*t+2*k+1}')
            a(f'ds_write_b64 v{aSw}, {vr(W_+16+2*t,2)} offset:{STB*h+512*t}')
    stage(0)
    for yb in range(4):
        for p in range(2):
            for k in range(2):
                a(f'v_cvt_pk_bf16_f32 v{FR+4*yb+2*p+k}, v{GA+8*yb+4*p+2*k}, v{GA+8*yb+4*p+2*k+1}')
    for yb in range(4):
        for t in range(4+yb, 8):
            mf(t, FR+4*yb, FR+32+4*(t-yb-4))
    stamp(a, 's3', 3)
    uwrite(1)
    stamp(a, 'uw', 3)
    a('s_waitcnt lgkmcnt(0)\ns_barrier')
    stamp(a, 6)
    stamp(a, 'bar3', 3)
    def flush(h):
        for q in range(2):
            for hc in range(2):
                a(f'ds_read_b64_tr_b16 {vr(GA+4*q+2*hc,2)}, v{aSr} offset:{STB*h+4*SP_*hc+128*q}')
        for q in range(2):
            a(f's_mov_b32 s{sT}, {(1024*h+64*q)*4096}')
            a(f'buffer_store_dwordx4 {vr(GA+4*q,4)}, v{aOut}, {srd(sOUT)}, s{sT} offen')
    flush(0)
    pairs_b = sorted([(x, t) for t in range(4, 8) for x in range(4)], key=lambda p: max(p[0], p[1]-p[0]-1))
    conv_group([1,2,3,4,5,6,7], pairs_b)
    stamp(a, 7)
    stamp(a, '1b', 3)
    if OPT.get('wbl2', 0) & 2:
        a(f's_and_b32 s{sT}, s2, {OPT.get("wblm", 0x78)}\ns_or_b32 s{sT}, s{sT}, s{sW}')
        with a.cond('s_cbranch_scc1'): a('buffer_wbl2 sc1')
    stage(1)
    a('s_waitcnt lgkmcnt(0)\ns_barrier')
    flush(1)
    stamp(a, 8)
    if OPT.get('wbl2', 0) & 1:
        a('s_waitcnt vmcnt(0)\ns_barrier')
        a(f's_cmp_lg_u32 s{sW}, 0')
        with a.cond('s_cbranch_scc1'): a('buffer_wbl2 sc1')
    if OPT['stamps']:
        a('s_waitcnt vmcnt(0)')
        stamp(a, 'end')
        stamps_out(a, len(NAMES['B'])+1, T+1, {0: 0, 1: 13, 4: 14, 9: 15})
    calib(a)
    a('s_endpgm')
    a.label('L_B_end')
    a.reset_counters()

HEADER = open('concat_heads__spectral_gfnet__ssm_conv_s4__prompt.s.ref').read().split('; Override launch')[0]

def build(**opt):
    OPT.update(opt)
    a = Asm()
    stamp(a, 0)
    if OPT.get('calib'): a('s_memrealtime s[96:97]')
    a(f's_cmp_ge_u32 s2, {128 if OPT.get("noB") else 256}\ns_cbranch_scc1 L_exit')
    if OPT.get('noA'): a('s_cmp_lt_u32 s2, 128\ns_cbranch_scc1 L_exit')
    a('s_cmp_ge_u32 s2, 128\ns_cbranch_scc1 L_B')
    gen_A(a)
    gen_B(a)
    a.label('L_exit')
    a('s_endpgm')
    a.pad()
    s = HEADER + f'; stamps A={",".join(NAMES["A"])} B={",".join(NAMES["B"])}\n' * bool(OPT['stamps']) + f'; @launch grid=(256,1,1) block=(512,1,1) lds={LDS_BYTES}\n'
    s += f'''.amdgcn_target "amdgcn-amd-amdhsa--gfx950"
.text
.globl {KN}
.p2align 8
.type {KN},@function
{KN}:
''' + a.text() + f'''.section .rodata,"a"
.p2align 6
.amdhsa_kernel {KN}
  .amdhsa_next_free_vgpr 256
  .amdhsa_next_free_sgpr 102
  .amdhsa_accum_offset 256
  .amdhsa_group_segment_fixed_size 0
  .amdhsa_kernarg_size 120
  .amdhsa_user_sgpr_count 2
  .amdhsa_user_sgpr_kernarg_segment_ptr 1
  .amdhsa_system_sgpr_workgroup_id_x 1
.end_amdhsa_kernel
'''
    return s, a

if __name__ == '__main__':
    out = sys.argv[1] if len(sys.argv) > 1 else 'k.s'
    opt = {}
    for x in sys.argv[2:]:
        k, _, v = x.partition('=')
        opt[k] = int(v) if v else True
    s, a = build(**opt)
    open(out, 'w').write(s)
    import subprocess
    sys.path.insert(0, 'cdna_kernels')
    import cdna_launch as cl
    open('_h.s', 'w').write(cl.with_harness_metadata(s, KN, 15, launch_lists=True))
    r = subprocess.run(['clang', '-x', 'assembler', '-target', 'amdgcn-amd-amdhsa', '-mcpu=gfx950', '_h.s', '-o', '_h.co'], capture_output=True, text=True)
    if r.returncode: print(r.stderr[:1500]); sys.exit(1)
    p = cl.address_register_problem('_h.co', KN)
    if p: print(p); sys.exit(1)
    print('instructions', sum(1 for x in a.ins if x.kind not in ('label','dir')), 'nops', a.nops)
```
